```python
import torch

def _softmax(x, axis=-1):
    return torch.softmax(x, dim=axis)
def _gelu(x):
    return torch.nn.functional.gelu(x, approximate="tanh")
def _silu(x):
    return torch.nn.functional.silu(x)
def _sigmoid(x):
    return torch.sigmoid(x)
def _layernorm(x, axis=-1, eps=1e-5):
    m = x.mean(dim=axis, keepdim=True)
    v = x.var(dim=axis, keepdim=True, unbiased=False)
    return (x - m) / torch.sqrt(v + eps)
def _scatter_add(tgt, idx, src, axis=0):
    return tgt.clone().index_add_(axis, idx, src)
def _segment_sum(src, seg, n):
    out = torch.zeros((n,) + src.shape[1:], dtype=src.dtype)
    return out.index_add_(0, seg, src)
def _pad(x, pw):
    flat = tuple(v for pair in reversed(pw) for v in pair)
    return torch.nn.functional.pad(x, flat)

kernel_name = 'interleave_layers__sliding_block__mha_block__prompt'

def setup_inputs():

    _w = (lambda a: (lambda t: t.to(torch.bfloat16) if t.is_floating_point() else t)(torch.as_tensor(a)))
    def _A_setup():
        B, S, D = 1, 2048, 640
        return {
            "x": _w((lambda *s: torch.randn(*s, dtype=torch.bfloat16) * 0.05)(B, S, D)),
            "wqkv": _w((lambda *s: torch.randn(*s, dtype=torch.bfloat16) * 0.05)(D, 3 * D)),
            "wo": _w((lambda *s: torch.randn(*s, dtype=torch.bfloat16) * 0.05)(D, D)),
        }
    _A_in = _A_setup()

    def _B_setup():
        B, S, D, H = 1, 2048, 640, 32
        return {
            "x": _w((lambda *s: torch.randn(*s, dtype=torch.bfloat16) * 0.05)(B, S, D)),
            "wqkv": _w((lambda *s: torch.randn(*s, dtype=torch.bfloat16) * 0.05)(D, 3 * D)),
            "wo": _w((lambda *s: torch.randn(*s, dtype=torch.bfloat16) * 0.05)(D, D)),
        }
    _B_in = _B_setup()

    return {
        "A_x": _A_in["x"],
        "A_wqkv": _A_in["wqkv"],
        "A_wo": _A_in["wo"],
        "B_x": _B_in["x"],
        "B_wqkv": _B_in["wqkv"],
        "B_wo": _B_in["wo"],
    }

def reference(A_x, A_wqkv, A_wo, B_x, B_wqkv, B_wo):
    def _A_ref(x, wqkv, wo):
        B, S, D = x.shape
        H = 32; Dh = D // H; W = 256
        qkv = (lambda x, *d: x.permute(*d))((x @ wqkv).reshape(B, S, 3, H, Dh), 2, 0, 3, 1, 4)
        q, k, v = qkv[0], qkv[1], qkv[2]
        scores = torch.einsum("bhqd,bhkd->bhqk", q, k) * (Dh ** -0.5)
        idx = torch.arange(S)
        mask = (idx[:, None] - idx[None, :] >= 0) & (idx[:, None] - idx[None, :] < W)
        scores = torch.where(mask[None, None], scores, -1e9)
        p = _softmax(scores, axis=-1)
        o = torch.einsum("bhqk,bhkd->bhqd", p, v)
        return (lambda x, *d: x.permute(*d))(o, 0, 2, 1, 3).reshape(B, S, D) @ wo

    def _B_ref(x, wqkv, wo):
        B, S, D = x.shape
        H = 32
        Dh = D // H
        qkv = (lambda x, *d: x.permute(*d))((x @ wqkv).reshape(B, S, 3, H, Dh), 2, 0, 3, 1, 4)
        q, k, v = qkv[0], qkv[1], qkv[2]
        scores = torch.einsum("bhqd,bhkd->bhqk", q, k) * (Dh ** -0.5)
        p = _softmax(scores, axis=-1)
        o = torch.einsum("bhqk,bhkd->bhqd", p, v)
        return (lambda x, *d: x.permute(*d))(o, 0, 2, 1, 3).reshape(B, S, D) @ wo

    x = A_x
    x = x + _A_ref(_layernorm(x, axis=-1), A_wqkv, A_wo)
    x = x + _B_ref(_layernorm(x, axis=-1), B_wqkv, B_wo)
    x = x + _A_ref(_layernorm(x, axis=-1), A_wqkv, A_wo)
    x = x + _B_ref(_layernorm(x, axis=-1), B_wqkv, B_wo)
    return x
```

```python
import re

TRANS = ("v_exp_f32", "v_log_f32", "v_rcp_f32", "v_rsq_f32", "v_sqrt_f32", "v_sin_f32", "v_cos_f32",
         "v_rcp_iflag_f32", "v_exp_f16")

def v(i, n=1):
    return f"v{i}" if n == 1 else f"v[{i}:{i+n-1}]"
def a(i, n=1):
    return f"a{i}" if n == 1 else f"a[{i}:{i+n-1}]"
def s(i, n=1):
    return f"s{i}" if n == 1 else f"s[{i}:{i+n-1}]"

_REG = re.compile(r"^(-|abs\()?\s*([vas])(\d+|\[(\d+):(\d+)\])\)?$")

def regs_of(op):
    op = op.strip()
    if op in ("vcc",):
        return {("s", "vcc")}
    if op in ("exec",):
        return {("s", "exec")}
    if op == "m0":
        return {("s", "m0")}
    m = _REG.match(op)
    if not m:
        return set()
    k = m.group(2)
    if m.group(4) is not None:
        return {(k, i) for i in range(int(m.group(4)), int(m.group(5)) + 1)}
    return {(k, int(m.group(3)))}

def split_ops(rest):
    out, depth, cur = [], 0, ""
    for ch in rest:
        if ch in "[(":
            depth += 1
        if ch in "])":
            depth -= 1
        if ch == "," and depth == 0:
            out.append(cur.strip()); cur = ""
        else:
            cur += ch
    if cur.strip():
        out.append(cur.strip())
    return out

class Ins:
    def __init__(self, text):
        self.text = text
        t = text.split(";")[0].strip()
        parts = t.split(None, 1)
        self.mn = parts[0]
        rest = parts[1] if len(parts) > 1 else ""
        ops = split_ops(rest)
        if ops:
            last = ops[-1].split()
            self.mods = last[1:]
            ops[-1] = last[0] if last else ""
        else:
            self.mods = []
        self.ops = ops
        mn = self.mn
        self.kind = "other"
        self.w = set(); self.r = set()
        self.srcA = self.srcB = self.srcC = set()
        self.passes = 0
        self.states = 1
        if mn == "s_nop":
            self.kind = "salu"; self.states = int(ops[0], 0) + 1
        elif mn.startswith("v_mfma"):
            self.kind = "mfma"
            self.w = regs_of(ops[0]); self.srcA = regs_of(ops[1]); self.srcB = regs_of(ops[2]); self.srcC = regs_of(ops[3])
            self.r = self.srcA | self.srcB | self.srcC
            self.passes = 8 if "32x32" in mn else 4
        elif mn.startswith("v_"):
            self.kind = "valu"
            if mn.startswith("v_cmp"):
                self.w = regs_of(ops[0])
                for o in ops[1:]: self.r |= regs_of(o)
                if mn.startswith("v_cmpx"): self.w |= {("s", "exec")}
            elif mn.startswith("v_permlane") and "swap" in mn:
                self.w = regs_of(ops[0]) | regs_of(ops[1]); self.r = set(self.w)
            elif mn.startswith(("v_add_co", "v_sub_co", "v_addc_co", "v_subb_co")):
                self.w = regs_of(ops[0]) | regs_of(ops[1])
                for o in ops[2:]: self.r |= regs_of(o)
            else:
                self.w = regs_of(ops[0])
                for o in ops[1:]: self.r |= regs_of(o)
                if mn.startswith(("v_fmac", "v_dot2c", "v_pk_fmac")): self.r |= self.w
        elif mn.startswith(("buffer_", "global_")):
            self.kind = "vmem"
            lds = "lds" in self.mods
            if "load" in mn and not lds:
                self.w = regs_of(ops[0])
                for o in ops[1:]: self.r |= regs_of(o)
            else:
                for o in ops: self.r |= regs_of(o)
                if lds: self.r |= {("s", "m0")}
            self.lds = lds
            self.store_data = regs_of(ops[0]) if ("store" in mn and mn.startswith("buffer_")) else set()
            self.wide_store = "store" in mn and ("x3" in mn or "x4" in mn)
        elif mn.startswith("ds_"):
            self.kind = "ds"
            if mn.startswith(("ds_read", "ds_bpermute", "ds_permute", "ds_swizzle")):
                self.w = regs_of(ops[0])
                for o in ops[1:]: self.r |= regs_of(o)
            else:
                for o in ops: self.r |= regs_of(o)
        elif mn.startswith("s_"):
            self.kind = "salu"
            if mn.startswith(("s_cmp", "s_cbranch", "s_branch", "s_waitcnt", "s_barrier", "s_endpgm", "s_setprio", "s_sleep", "s_bitcmp")):
                for o in ops: self.r |= regs_of(o)
            else:
                if ops: self.w = regs_of(ops[0])
                for o in ops[1:]: self.r |= regs_of(o)
                if "saveexec" in mn: self.w |= {("s", "exec")}
        self.trans = mn.split("_e32")[0].split("_e64")[0] in TRANS

def vec(rs):
    return {x for x in rs if x[0] in "va"}
def sca(rs):
    return {x for x in rs if x[0] == "s"}

def required(p, c):
    need = 0
    if p.kind == "valu":
        pw = vec(p.w); ps = sca(p.w)
        if c.kind == "mfma" and pw & c.r: need = max(need, 2)
        if c.kind == "valu" and c.mn.startswith("v_permlane") and pw & c.r: need = max(need, 2)
        if c.kind == "valu" and c.mn.startswith(("v_readfirstlane", "v_readlane")) and pw & c.r: need = max(need, 1)
        if c.kind == "valu" and any(m.startswith(("row_", "quad_perm", "wave_")) for m in c.mods) and pw & c.r: need = max(need, 2)
        if p.trans and c.kind == "valu" and not c.trans and pw & c.r: need = max(need, 1)
        if p.trans and c.kind in ("vmem", "ds") and pw & c.r: need = max(need, 1)
        if ps:
            if c.kind == "vmem" and ps & c.r: need = max(need, 5)
            if c.kind == "valu" and ps & c.r:
                need = max(need, 4 if c.mn.startswith(("v_readlane", "v_writelane")) else 2)
            if ("s", "exec") in ps and c.kind == "mfma": need = max(need, 4)
            if ("s", "exec") in ps and c.kind == "valu" and c.mn.startswith(("v_readfirstlane", "v_readlane", "v_permlane")): need = max(need, 4)
    if p.kind == "mfma":
        n_full = {4: 8, 8: 12}[p.passes]
        n_c = {4: 6, 8: 10}[p.passes]
        n_war = {4: 3, 8: 7}[p.passes]
        if c.kind == "mfma":
            if p.w & (c.srcA | c.srcB): need = max(need, n_full)
            if p.w & c.srcC:
                if not (p.w == c.srcC and p.passes == c.passes): need = max(need, n_c)
            elif p.w & c.w:
                need = max(need, n_c)
        elif c.kind in ("valu", "vmem", "ds"):
            if p.w & (c.r | c.w): need = max(need, n_full)
            if vec(p.srcC) & vec(c.w) and c.kind == "valu": need = max(need, n_war)
    if p.kind == "salu" and ("s", "m0") in p.w and c.kind == "vmem" and getattr(c, "lds", False): need = max(need, 1)
    if p.kind == "vmem" and getattr(p, "wide_store", False):
        if p.store_data & vec(c.w): need = max(need, 2 if c.kind == "valu" else 1)
    return need

def check_seq(seq, name=""):
    errs = []
    n = len(seq)
    for i, p in enumerate(seq):
        if p.kind not in ("valu", "mfma", "salu", "vmem"):
            continue
        dist = 0
        for j in range(i + 1, min(n, i + 24)):
            c = seq[j]
            need = required(p, c)
            if need > dist:
                errs.append(f"{name}: need {need} have {dist}: [{p.text.strip()}] -> [{c.text.strip()}]")
            dist += c.states
            if dist >= 20:
                break
    return errs

class Asm:
    def __init__(self):
        self.lines = []
        self.labels = {}
        self.vm = []
        self.lg = []
        self.uid = 0
    def __call__(self, text):
        for ln in text.strip("\n").split("\n"):
            ln = ln.strip()
            if ln:
                self.lines.append("    " + ln)
    def label(self, name):
        self.lines.append(f"{name}:")
    def newlabel(self, base):
        self.uid += 1
        return f"L_{base}_{self.uid}"
    def raw(self, text):
        self.lines.append(text)
    def comment(self, text):
        self.lines.append(f"    ; {text}")
    def vmem(self, text, tag=None):
        self(text); self.vm.append(tag)
    def wait_vm(self, tag):
        idx = max(i for i, t in enumerate(self.vm) if t == tag)
        n = len(self.vm) - 1 - idx
        assert n <= 63, n
        self(f"s_waitcnt vmcnt({n})")
        self.vm = self.vm[idx + 1:]
    def wait_vm_all(self):
        self("s_waitcnt vmcnt(0)"); self.vm = []
    def lds(self, text, tag=None):
        self(text); self.lg.append(tag)
    def wait_lg(self, tag):
        idxs = [i for i, t in enumerate(self.lg) if t == tag]
        if not idxs:
            return
        idx = max(idxs)
        n = len(self.lg) - 1 - idx
        assert n <= 15, n
        self(f"s_waitcnt lgkmcnt({n})")
        self.lg = self.lg[idx + 1:]
    def wait_lg_all(self):
        self("s_waitcnt lgkmcnt(0)"); self.lg = []
    def nop(self, states):
        while states > 0:
            k = min(states, 16)
            self(f"s_nop {k-1}")
            states -= k
    def text(self):
        return "\n".join(self.lines) + "\n"

def check_text(text):
    items = []
    labels = {}
    for ln in text.split("\n"):
        t = ln.split(";")[0].strip()
        if not t or t.startswith("."):
            continue
        if t.endswith(":"):
            labels[t[:-1]] = len(items)
            continue
        items.append(Ins(t))
    errs = []
    seg = []
    for it in items:
        seg.append(it)
        if it.mn in ("s_endpgm", "s_branch", "s_setpc_b64"):
            errs += check_seq(seg, "lin"); seg = []
    errs += check_seq(seg, "lin")
    for i, it in enumerate(items):
        if it.mn.startswith(("s_cbranch", "s_branch")):
            tgt = labels.get(it.ops[0])
            if tgt is None:
                continue
            pre = items[max(0, i - 24): i + 1]
            post = items[tgt: tgt + 24]
            cut = []
            for x in post:
                cut.append(x)
                if x.mn in ("s_endpgm", "s_branch"):
                    break
            e = check_seq(pre + cut, f"br {it.ops[0]}")
            errs += [x for x in e]
    return sorted(set(errs))
```

```python
import sys, math, struct
from gen import *

NAME = "interleave_layers__sliding_block__mha_block__prompt"
XF   = 0x0000000
OF   = 0x0300000
QF   = 0x0600000
KV   = 0x0900000
WQ_A = 0x1000000
WQ_B = 0x1300000
WO_A = 0x1600000
WO_B = 0x1700000
CS_A = 0x1800000
CS_B = 0x1808000
ST   = 0x1810000
WS_BYTES = 0x10000000
QBLK = 1536
KVBLK = 3072
HEADKV = 64 * KVBLK
HEADQ = 64 * QBLK

def f32(x):
    return struct.unpack("<I", struct.pack("<f", x))[0]

QSCALE = f32(math.log2(math.e) / math.sqrt(20.0))
NEG_BIG = f32(-1e30)

kernels = []

def kernel_begin(A, label):
    A.raw(f".globl {label}")
    A.raw(".p2align 8")
    A.raw(f".type {label},@function")
    A.label(label)

def ws_srd(A, sreg=8, ptr=4):
    A(f"""
    s_mov_b32 s{sreg}, s{ptr}
    s_and_b32 s{sreg+1}, s{ptr+1}, 0xffff
    s_mov_b32 s{sreg+2}, {WS_BYTES:#x}
    s_mov_b32 s{sreg+3}, 0x00020000
    """)

def split3(A, x, d0, d1, t0, t1, ssel_hi, smask):
    A(f"""
    v_and_b32 v{t0}, s{smask}, v{x}
    v_sub_f32 v{t1}, v{x}, v{t0}
    v_and_b32 v{d1}, s{smask}, v{t1}
    v_perm_b32 v{d0}, v{d1}, v{t0}, s{ssel_hi}
    v_sub_f32 v{t1}, v{t1}, v{d1}
    v_lshrrev_b32 v{d1}, 16, v{t1}
    """)

def emit_prep(A):
    kernel_begin(A, "prep_kernel")
    kernels.append(("prep_kernel", 128, 128, 64))
    A("""
    s_load_dwordx4 s[4:7], s[0:1], 0
    s_load_dwordx2 s[20:21], s[0:1], 16
    s_load_dwordx4 s[24:27], s[0:1], 32
    s_load_dwordx2 s[28:29], s[0:1], 64
    s_mov_b32 s40, 0x05040100
    s_mov_b32 s41, 0x07060302
    s_mov_b32 s42, 0xffff0000
    s_mov_b32 s15, 0x00020000
    s_waitcnt lgkmcnt(0)
    """)
    ws_srd(A, 8, 28)
    A("""
    s_cmp_lt_u32 s2, 160
    s_cbranch_scc1 L_prep_wq
    s_cmp_lt_u32 s2, 190
    s_cbranch_scc1 L_prep_cs
    s_cmp_lt_u32 s2, 244
    s_cbranch_scc1 L_prep_wo
    s_cmp_lt_u32 s2, 308
    s_cbranch_scc1 L_prep_x
    s_cmp_lt_u32 s2, 564
    s_cbranch_scc1 L_prep_const
    s_endpgm
    """)

    def transpose_store(R, O, vdst, sdst):
        A("s_waitcnt vmcnt(0)")
        for j in range(8):
            for p in range(4):
                A(f"v_perm_b32 v{O+4*j+p}, v{R+4*(2*p+1)+j//2}, v{R+4*(2*p)+j//2}, s{40 + (j & 1)}")
        for j in range(8):
            A(f"buffer_store_dwordx4 v[{O+4*j}:{O+4*j+3}], v{vdst}, s[8:11], s{sdst} offen offset:{16*j}")
        A("s_endpgm")

    A.label("L_prep_wq")
    A(f"""
    s_cmp_ge_u32 s2, 80
    s_cselect_b32 s12, s24, s6
    s_cselect_b32 s13, s25, s7
    s_mov_b32 s30, {WQ_A:#x}
    s_cselect_b32 s30, {WQ_B:#x}, s30
    s_cselect_b32 s31, 80, 0
    s_and_b32 s13, s13, 0xffff
    s_mov_b32 s14, 2457600
    s_sub_u32 s31, s2, s31
    s_lshr_b32 s32, s31, 1
    s_and_b32 s33, s31, 1
    s_lshl_b32 s34, s32, 4
    s_lshl_b32 s35, s33, 2
    s_add_u32 s34, s34, s35
    s_mul_i32 s34, s34, 3840
    s_lshl_b32 s35, s32, 12
    s_add_u32 s30, s30, s35
    s_lshl_b32 s35, s33, 9
    s_add_u32 s30, s30, s35
    v_lshlrev_b32 v1, 4, v0
    v_lshrrev_b32 v2, 4, v0
    s_mov_b32 s35, 163840
    v_mul_lo_u32 v2, v2, s35
    v_bfe_u32 v3, v0, 2, 2
    v_lshl_add_u32 v2, v3, 10, v2
    v_and_b32 v3, 3, v0
    v_lshl_add_u32 v2, v3, 7, v2
    v_cmp_gt_u32 vcc, 240, v0
    s_and_saveexec_b64 s[36:37], vcc
    """)
    for i, r in enumerate((0, 1, 2, 3, 8, 9, 10, 11)):
        A(f"s_add_u32 s{44+i}, s34, {r*3840}")
        A(f"buffer_load_dwordx4 v[{8+4*i}:{8+4*i+3}], v1, s[12:15], s{44+i} offen")
    transpose_store(8, 40, 2, 30)

    A.label("L_prep_cs")
    A(f"""
    s_cmp_ge_u32 s2, 175
    s_cselect_b32 s12, s24, s6
    s_cselect_b32 s13, s25, s7
    s_mov_b32 s30, {CS_A:#x}
    s_cselect_b32 s30, {CS_B:#x}, s30
    s_mov_b32 s31, 160
    s_cselect_b32 s31, 175, s31
    s_and_b32 s13, s13, 0xffff
    s_mov_b32 s14, 2457600
    s_sub_u32 s31, s2, s31
    s_lshl_b32 s32, s31, 8
    s_lshl_b32 s33, s31, 11
    s_add_u32 s30, s30, s33
    v_and_b32 v1, 15, v0
    v_lshrrev_b32 v2, 4, v0
    s_mov_b32 s35, {40*3840}
    v_mul_lo_u32 v3, v2, s35
    v_lshl_add_u32 v3, v1, 4, v3
    """)
    for j in range(8):
        A(f"v_mov_b32 v{8+j}, 0")
    for b in range(2):
        for i in range(20):
            A(f"s_add_u32 s33, s32, {(b*20+i)*3840}")
            A(f"buffer_load_dwordx4 v[{24+4*i}:{24+4*i+3}], v3, s[12:15], s33 offen")
        for i in range(20):
            A(f"s_waitcnt vmcnt({19-i})")
            for w in range(4):
                r = 24 + 4 * i + w
                A(f"""
                v_lshlrev_b32 v16, 16, v{r}
                v_and_b32 v17, s42, v{r}
                v_add_f32 v{8+2*w}, v{8+2*w}, v16
                v_add_f32 v{9+2*w}, v{9+2*w}, v17
                """)
    A("""
    v_lshlrev_b32 v4, 9, v2
    v_lshl_add_u32 v4, v1, 5, v4
    ds_write_b128 v4, v[8:11]
    ds_write_b128 v4, v[12:15] offset:16
    s_waitcnt lgkmcnt(0)
    s_barrier
    v_cmp_gt_u32 vcc, 128, v0
    s_and_saveexec_b64 s[36:37], vcc
    s_cbranch_execz L_prep_end
    v_lshlrev_b32 v4, 2, v0
    """)
    for g in range(16):
        A(f"ds_read_b32 v{24+g}, v4 offset:{g*512}")
    A("s_waitcnt lgkmcnt(0)")
    for g in range(1, 16):
        A(f"v_add_f32 v24, v24, v{24+g}")
    split3(A, 24, 8, 9, 16, 17, 41, 42)
    A("""
    v_mov_b32 v10, 0
    v_mov_b32 v11, 0
    v_lshrrev_b32 v5, 5, v0
    v_lshlrev_b32 v5, 9, v5
    v_and_b32 v6, 31, v0
    v_lshl_add_u32 v5, v6, 3, v5
    buffer_store_dwordx2 v[8:9], v5, s[8:11], s30 offen
    buffer_store_dwordx2 v[10:11], v5, s[8:11], s30 offen offset:256
    """)
    A.label("L_prep_end")
    A("s_endpgm")

    A.label("L_prep_wo")
    A(f"""
    s_cmp_ge_u32 s2, 217
    s_cselect_b32 s12, s26, s20
    s_cselect_b32 s13, s27, s21
    s_mov_b32 s30, {WO_A:#x}
    s_cselect_b32 s30, {WO_B:#x}, s30
    s_mov_b32 s31, 190
    s_cselect_b32 s31, 217, s31
    s_and_b32 s13, s13, 0xffff
    s_mov_b32 s14, 819200
    s_sub_u32 s31, s2, s31
    s_mul_i32 s31, s31, 3
    v_mul_u32_u24 v1, 205, v0
    v_lshrrev_b32 v1, 14, v1
    v_mul_u32_u24 v2, 80, v1
    v_sub_u32 v2, v0, v2
    v_add_u32 v3, s31, v1
    v_mul_u32_u24 v4, 10240, v3
    v_lshl_add_u32 v4, v2, 4, v4
    v_mul_u32_u24 v5, 205, v2
    v_lshrrev_b32 v5, 11, v5
    v_mul_u32_u24 v6, 10, v5
    v_sub_u32 v6, v2, v6
    v_mul_u32_u24 v5, 102400, v5
    v_lshrrev_b32 v7, 2, v3
    v_mul_u32_u24 v7, 5120, v7
    v_add_u32 v5, v5, v7
    v_lshrrev_b32 v7, 1, v6
    v_lshl_add_u32 v5, v7, 10, v5
    v_and_b32 v7, 3, v3
    v_lshl_add_u32 v5, v7, 8, v5
    v_and_b32 v7, 1, v6
    v_lshl_add_u32 v5, v7, 7, v5
    v_cmp_gt_u32 vcc, 240, v0
    s_and_saveexec_b64 s[36:37], vcc
    v_cmp_gt_u32 vcc, 80, v3
    s_and_saveexec_b64 s[36:37], vcc
    s_cbranch_execz L_prep_end
    s_mov_b32 s32, 5120
    """)
    for i in range(8):
        A(f"buffer_load_dwordx4 v[{8+4*i}:{8+4*i+3}], v4, s[12:15], {'0' if i < 4 else 's32'} offen offset:{(i%4)*1280}")
    transpose_store(8, 40, 5, 30)

    A.label("L_prep_x")
    A(f"""
    s_mov_b32 s12, s4
    s_and_b32 s13, s5, 0xffff
    s_mov_b32 s14, 2621440
    s_sub_u32 s31, s2, 244
    s_mul_i32 s32, s31, 40960
    s_add_u32 s33, s32, {XF:#x}
    s_lshl_b32 s34, s31, 11
    s_add_u32 s34, s34, {ST:#x}
    s_mov_b32 s35, 0x3f803f80
    v_and_b32 v1, 31, v0
    v_lshrrev_b32 v2, 5, v0
    v_mul_u32_u24 v3, 1280, v1
    v_mul_u32_u24 v4, 160, v2
    v_add_u32 v3, v3, v4
    v_mul_u32_u24 v4, 5120, v2
    v_lshl_add_u32 v4, v1, 4, v4
    v_lshlrev_b32 v5, 6, v1
    v_lshl_add_u32 v5, v2, 3, v5
    v_mov_b32 v6, 0
    v_mov_b32 v7, 0
    """)
    for sl in range(5):
        R = 8 + 8 * sl
        A(f"""
        buffer_load_dwordx2 v[{R}:{R+1}], v3, s[12:15], s32 offen offset:{sl*32}
        buffer_load_dwordx2 v[{R+4}:{R+5}], v3, s[12:15], s32 offen offset:{sl*32+8}
        buffer_load_dwordx2 v[{R+2}:{R+3}], v3, s[12:15], s32 offen offset:{sl*32+16}
        buffer_load_dwordx2 v[{R+6}:{R+7}], v3, s[12:15], s32 offen offset:{sl*32+24}
        """)
    A("s_waitcnt vmcnt(0)")
    A("s_add_u32 s36, s33, 4096")
    for sl in range(5):
        R = 8 + 8 * sl
        so = "s33" if sl < 4 else "s36"
        off = (sl % 4) * 1024
        A(f"""
        buffer_store_dwordx4 v[{R}:{R+3}], v4, s[8:11], {so} offen offset:{off}
        buffer_store_dwordx4 v[{R+4}:{R+7}], v4, s[8:11], {so} offen offset:{off+512}
        """)
    for r in range(8, 48):
        A(f"""
        v_lshlrev_b32 v48, 16, v{r}
        v_and_b32 v49, s42, v{r}
        v_add_f32 v6, v6, v48
        v_fmac_f32 v7, v48, v48
        v_add_f32 v6, v6, v49
        v_fmac_f32 v7, v49, v49
        """)
    A("""
    buffer_store_dwordx2 v[6:7], v5, s[8:11], s34 offen
    s_endpgm
    """)

    A.label("L_prep_const")
    A(f"""
    s_sub_u32 s31, s2, 308
    s_mul_i32 s31, s31, {8*KVBLK}
    s_add_u32 s31, s31, {KV:#x}
    v_lshrrev_b32 v1, 5, v0
    v_mul_u32_u24 v1, {KVBLK}, v1
    v_and_b32 v2, 31, v0
    v_lshl_add_u32 v3, v2, 4, v1
    v_mul_u32_u24 v4, 384, v2
    v_add_u32 v4, v4, v1
    v_mov_b32 v8, 0x3f803f80
    v_mov_b32 v9, 0x3f80
    v_mov_b32 v12, 0x3f803f80
    v_mov_b32 v13, 0x3f803f80
    v_mov_b32 v14, 0x3f803f80
    v_mov_b32 v15, 0x3f803f80
    buffer_store_dwordx2 v[8:9], v3, s[8:11], s31 offen offset:1032
    v_cmp_gt_u32 vcc, 4, v2
    s_and_saveexec_b64 s[36:37], vcc
    buffer_store_dwordx4 v[12:15], v4, s[8:11], s31 offen offset:{1536+320}
    s_endpgm
    """)

def bf16_round(A, dst, src):
    A(f"""
    v_cvt_pk_bf16_f32 v{dst}, v{src}, v{src}
    v_and_b32 v{dst}, 0xffff0000, v{dst}
    """)

def emit_qkv(A):
    for lab, wq, cs in (("qkva_kernel", WQ_A, CS_A), ("qkvb_kernel", WQ_B, CS_B)):
        kernel_begin(A, lab)
        kernels.append((lab, 176 + 160, 176, 64))
        A(f"""
        s_mov_b32 s40, {wq:#x}
        s_mov_b32 s41, {cs:#x}
        s_branch L_qkv
        """)
    A.raw(".p2align 6")
    A.label("L_qkv")
    ACC = 0
    BF = 64
    VL16 = 96; VB1 = 97; VB2 = 98; VT = 99; VH = 100
    NM = 102
    RS = 104
    CSR = 106
    STR = 116
    TMP = 132
    RSV = 144
    OUT = 160
    A(f"""
    s_load_dwordx2 s[4:5], s[0:1], 64
    s_cmp_ge_u32 s2, 256
    s_cbranch_scc1 L_qkv_exit
    s_and_b32 s13, s2, 7
    s_lshr_b32 s14, s2, 3
    s_lshr_b32 s15, s13, 1
    s_lshl_b32 s15, s15, 2
    s_and_b32 s16, s14, 3
    s_add_u32 s15, s15, s16
    s_and_b32 s16, s13, 1
    s_lshl_b32 s16, s16, 3
    s_lshr_b32 s17, s14, 2
    s_add_u32 s16, s16, s17
    s_cmp_ge_u32 s16, 15
    s_cbranch_scc1 L_qkv_exit
    v_lshrrev_b32 v{TMP}, 6, v0
    v_and_b32 v{TMP+1}, 63, v0
    v_and_b32 v{VT}, 31, v0
    v_readfirstlane_b32 s12, v{TMP}
    v_bfe_u32 v{VH}, v0, 5, 1
    v_lshlrev_b32 v{VL16}, 4, v{TMP+1}
    v_add_u32 v{VB1}, 0x10000, v{VL16}
    v_add_u32 v{VB2}, 0x20000, v{VL16}
    v_lshlrev_b32 v{TMP+2}, 6, v{VT}
    v_lshlrev_b32 v{TMP+3}, 3, v{TMP+1}
    s_lshl_b32 s18, s15, 2
    s_add_u32 s18, s18, s12
    s_lshl_b32 s19, s18, 11
    s_add_u32 s19, s19, {ST:#x}
    s_mul_i32 s20, s18, 40960
    s_add_u32 s20, s20, {XF:#x}
    s_lshl_b32 s22, s12, 12
    s_mul_i32 s21, s16, 163840
    s_add_u32 s21, s21, s40
    s_add_u32 s21, s21, s22
    s_lshl_b32 s23, s16, 11
    s_add_u32 s23, s23, s41
    s_waitcnt lgkmcnt(0)
    """)
    ws_srd(A, 8, 4)
    for i in range(4):
        A.vmem(f"buffer_load_dwordx4 v[{STR+4*i}:{STR+4*i+3}], v{TMP+2}, s[8:11], s19 offen offset:{16*i}", "st")
    for i in range(4):
        A.vmem(f"buffer_load_dwordx2 v[{CSR+2*i}:{CSR+2*i+1}], v{TMP+3}, s[8:11], s23 offen offset:{512*i}", "cs")

    def chunk_loads(c):
        A(f"s_add_u32 s24, s20, {c*4096}")
        A(f"s_add_u32 s25, s21, {c*16384}")
        A(f"s_add_u32 m0, s22, {c*16384}")
        for i in range(4):
            k = 4 * c + i
            A.vmem(f"buffer_load_dwordx4 a[{4*k}:{4*k+3}], v{VL16}, s[8:11], s24 offen offset:{1024*i}", f"c{c}")
        for i in range(4):
            A.vmem(f"buffer_load_dwordx4 v{VL16}, s[8:11], s25 offen offset:{1024*i} lds", f"c{c}")
    PRE = 6
    for c in range(PRE):
        chunk_loads(c)
    A.wait_vm("st")
    for i in range(1, 8):
        A(f"v_add_f32 v{STR}, v{STR}, v{STR+2*i}")
        A(f"v_add_f32 v{STR+1}, v{STR+1}, v{STR+2*i+1}")
    inv = f32(1.0 / 640.0)
    A(f"""
    v_mul_f32 v{TMP}, {inv:#x}, v{STR}
    v_mul_f32 v{TMP+1}, {inv:#x}, v{STR+1}
    v_fma_f32 v{TMP+1}, -v{TMP}, v{TMP}, v{TMP+1}
    v_max_f32 v{TMP+1}, 0, v{TMP+1}
    """)
    bf16_round(A, TMP + 1, TMP + 1)
    A(f"v_add_f32 v{TMP+1}, {f32(1e-5):#x}, v{TMP+1}")
    bf16_round(A, TMP + 1, TMP + 1)
    A(f"v_sqrt_f32 v{TMP+1}, v{TMP+1}")
    A(f"v_sub_f32 v{TMP}, 0, v{TMP}")
    bf16_round(A, TMP + 1, TMP + 1)
    A(f"""
    v_rcp_f32 v{RS}, v{TMP+1}
    v_cvt_pk_bf16_f32 v{NM}, v{TMP}, v{TMP}
    v_cmp_eq_u32 s[26:27], 0, v{VH}
    v_and_b32 v{NM+1}, 0xffff, v{NM}
    v_mov_b32 v{TMP+2}, 0
    v_cndmask_b32 v{NM}, v{TMP+2}, v{NM}, s[26:27]
    v_cndmask_b32 v{NM+1}, v{TMP+2}, v{NM+1}, s[26:27]
    s_cmp_ge_u32 s16, 10
    s_cbranch_scc1 L_qkv_v
    """)
    saved_vm = list(A.vm)

    def ldsaddr(sidx, cb):
        addr = sidx * 4096 + cb * 1024
        base = (VL16, VB1, VB2)[addr >> 16]
        return base, addr & 0xffff

    def main(is_v):
        A.wait_vm("cs")
        for cb in range(4):
            acc = v(ACC + 16 * cb, 16)
            cs = v(CSR + 2 * cb, 2); nm = v(NM, 2)
            if is_v:
                A(f"v_mfma_f32_32x32x8_bf16 {acc}, {nm}, {cs}, 0")
            else:
                A(f"v_mfma_f32_32x32x8_bf16 {acc}, {cs}, {nm}, 0")
        def rd(sidx, cb):
            base, off = ldsaddr(sidx, cb)
            r = BF + 16 * (sidx % 2) + 4 * cb
            A.lds(f"ds_read_b128 v[{r}:{r+3}], v{base} offset:{off}", (sidx, cb))
        A.wait_vm("c0")
        A("s_barrier")
        for sidx in range(2):
            for cb in range(4):
                rd(sidx, cb)
        for sidx in range(40):
            nxt = sidx + 2
            if nxt < 40 and nxt % 4 == 0:
                c = nxt // 4
                A.wait_vm(f"c{c}")
                A("s_barrier")
            for cb in range(4):
                A.wait_lg((sidx, cb))
                acc = v(ACC + 16 * cb, 16)
                bf = v(BF + 16 * (sidx % 2) + 4 * cb, 4)
                xa = a(4 * sidx, 4)
                if is_v:
                    A(f"v_mfma_f32_32x32x16_bf16 {acc}, {xa}, {bf}, {acc}")
                else:
                    A(f"v_mfma_f32_32x32x16_bf16 {acc}, {bf}, {xa}, {acc}")
                if nxt < 40:
                    rd(nxt, cb)
            if sidx % 4 == 0 and sidx // 4 + PRE < 10:
                chunk_loads(sidx // 4 + PRE)

    A(f"""
    s_cmp_ge_u32 s16, 5
    s_cselect_b32 s28, 5, 0
    s_mov_b32 s29, {QBLK}
    s_cselect_b32 s29, {KVBLK}, s29
    s_mov_b32 s30, {QF:#x}
    s_cselect_b32 s30, {KV:#x}, s30
    s_cselect_b32 s31, 1.0, {QSCALE:#x}
    s_sub_u32 s28, s16, s28
    s_lshl_b32 s28, s28, 5
    s_mul_i32 s32, s18, s29
    s_add_u32 s30, s30, s32
    s_lshl_b32 s29, s29, 6
    v_mul_f32 v{RS}, s31, v{RS}
    v_add_u32 v{TMP}, s28, v{VH}
    v_lshlrev_b32 v{TMP+1}, 4, v{VT}
    v_mov_b32 v{RS+1}, v{RS}
    """)
    for cb in range(4):
        for g in range(4):
            d = STR + 4 * cb + g
            A(f"""
            v_add_u32 v{TMP+2}, {8*cb+2*g}, v{TMP}
            v_mul_u32_u24 v{TMP+3}, 205, v{TMP+2}
            v_lshrrev_b32 v{TMP+3}, 10, v{TMP+3}
            v_mul_u32_u24 v{TMP+4}, 5, v{TMP+3}
            v_sub_u32 v{TMP+4}, v{TMP+2}, v{TMP+4}
            v_mad_u32_u24 v{d}, v{TMP+3}, s29, v{TMP+1}
            v_lshrrev_b32 v{TMP+5}, 1, v{TMP+4}
            v_lshl_add_u32 v{d}, v{TMP+5}, 9, v{d}
            v_and_b32 v{TMP+5}, 1, v{TMP+4}
            v_lshl_add_u32 v{d}, v{TMP+5}, 3, v{d}
            """)
    main(False)
    A.nop(12)
    for cb in range(4):
        for g in range(4):
            r = ACC + 16 * cb + 4 * g
            o = OUT + 2 * ((4 * cb + g) % 8)
            A(f"""
            v_pk_mul_f32 v[{r}:{r+1}], v[{r}:{r+1}], v[{RS}:{RS+1}]
            v_pk_mul_f32 v[{r+2}:{r+3}], v[{r+2}:{r+3}], v[{RS}:{RS+1}]
            v_cvt_pk_bf16_f32 v{r}, v{r}, v{r+1}
            v_cvt_pk_bf16_f32 v{r+1}, v{r+2}, v{r+3}
            buffer_store_dwordx2 v[{r}:{r+1}], v{STR+4*cb+g}, s[8:11], s30 offen
            """)
    A.label("L_qkv_exit")
    A("s_endpgm")

    A.label("L_qkv_v")
    A.vm = saved_vm
    A.lg = []
    A(f"""
    s_sub_u32 s28, s16, 10
    s_lshl_b32 s28, s28, 7
    s_mul_i32 s30, s18, {KVBLK}
    s_add_u32 s30, s30, {KV + 1536:#x}
    s_mov_b32 s29, {HEADKV}
    v_add_u32 v{TMP}, s28, v{VT}
    v_mul_u32_u24 v{TMP+1}, 384, v{VH}
    v_lshlrev_b32 v{TMP+6}, 4, v{VH}
    """)
    for r in range(16):
        tok = 8 * (r // 4) + r % 4
        A(f"v_add_u32 v{TMP+7}, {4*tok}, v{TMP+6}")
        A.lds(f"ds_bpermute_b32 v{RSV+r}, v{TMP+7}, v{RS}", "bp")
        if r == 7:
            A.wait_lg_all()
    for cb in range(4):
        d = STR + cb
        A(f"""
        v_add_u32 v{TMP+2}, {32*cb}, v{TMP}
        v_mul_u32_u24 v{TMP+3}, 3277, v{TMP+2}
        v_lshrrev_b32 v{TMP+3}, 16, v{TMP+3}
        v_mul_u32_u24 v{TMP+4}, 20, v{TMP+3}
        v_sub_u32 v{TMP+4}, v{TMP+2}, v{TMP+4}
        v_mad_u32_u24 v{d}, v{TMP+3}, s29, v{TMP+1}
        v_lshl_add_u32 v{d}, v{TMP+4}, 4, v{d}
        """)
    A.wait_lg_all()
    main(True)
    A.nop(12)
    for cb in range(4):
        for j in range(2):
            r = ACC + 16 * cb + 8 * j
            for p in range(4):
                A(f"v_pk_mul_f32 v[{r+2*p}:{r+2*p+1}], v[{r+2*p}:{r+2*p+1}], v[{RSV+8*j+2*p}:{RSV+8*j+2*p+1}]")
            for p in range(4):
                A(f"v_cvt_pk_bf16_f32 v{r+p}, v{r+2*p}, v{r+2*p+1}")
            A(f"buffer_store_dwordx4 v[{r}:{r+3}], v{STR+cb}, s[8:11], s30 offen offset:{768*j}")
    A("s_endpgm")
    A.vm = []; A.lg = []

S0 = 0; S1 = 16; OACC = 32; PP = 48; K1R = 56; K2R = 60; Q2R = 62; Q1R = 64; V0R = 68; V1R = 72
AK1 = 76; AK2 = 77; AV = 78; BK1 = 79; BK2 = 80; BV = 81
AVT = 82; AVH = 83; AVL16 = 84; AT = 86
MSK_D = 100; MSK_F = 116; CM = 132
CHUNK = 8 * KVBLK

def attn_step(A, cur, nxt, qk_c, rdk, pv1, rdv1, pv0, rdv0, hooks=None):
    hooks = hooks or {}
    def ex(i):
        for r in range(4 * i, 4 * i + 4):
            A(f"v_exp_f32 v{cur+r}, v{cur+r}")
        A(f"v_cvt_pk_bf16_f32 v{PP+2*i}, v{cur+4*i}, v{cur+4*i+1}")
        A(f"v_cvt_pk_bf16_f32 v{PP+2*i+1}, v{cur+4*i+2}, v{cur+4*i+3}")
    if "a" in hooks: hooks["a"]()
    if qk_c is not None:
        A.wait_lg("k1")
        A(f"v_mfma_f32_32x32x16_bf16 {v(nxt,16)}, {v(K1R,4)}, {v(Q1R,4)}, {qk_c}")
    if rdk is not None:
        A.lds(f"ds_read_b128 {v(K1R,4)}, v{AK1} offset:{rdk}", "k1")
    ex(0)
    if qk_c is not None:
        A.wait_lg("k2")
        A(f"v_mfma_f32_32x32x8_bf16 {v(nxt,16)}, {v(K2R,2)}, {v(Q2R,2)}, {v(nxt,16)}")
    if rdk is not None:
        A.lds(f"ds_read_b64 {v(K2R,2)}, v{AK2} offset:{rdk}", "k2")
    ex(1)
    if pv1:
        A.wait_lg("v1")
        A(f"v_mfma_f32_32x32x16_bf16 {v(OACC,16)}, {v(V1R,4)}, {v(PP+4,4)}, {v(OACC,16)}")
    if rdv1 is not None:
        A.lds(f"ds_read_b128 {v(V1R,4)}, v{AV} offset:{rdv1+768}", "v1")
    if "b" in hooks: hooks["b"]()
    ex(2)
    if pv0:
        A.wait_lg("v0")
        A(f"v_mfma_f32_32x32x16_bf16 {v(OACC,16)}, {v(V0R,4)}, {v(PP,4)}, {v(OACC,16)}")
    if rdv0 is not None:
        A.lds(f"ds_read_b128 {v(V0R,4)}, v{AV} offset:{rdv0}", "v0")
    ex(3)

def attn_setup(A, exit_label):
    A(f"""
    s_load_dwordx2 s[4:5], s[0:1], 64
    s_cmp_ge_u32 s2, 256
    s_cbranch_scc1 {exit_label}
    s_and_b32 s13, s2, 7
    s_lshr_b32 s14, s2, 3
    s_lshl_b32 s13, s13, 2
    s_and_b32 s15, s14, 3
    s_add_u32 s13, s13, s15
    s_lshr_b32 s14, s14, 2
    v_lshrrev_b32 v{AT}, 6, v0
    v_and_b32 v{AT+1}, 63, v0
    v_and_b32 v{AVT}, 31, v0
    v_readfirstlane_b32 s12, v{AT}
    v_bfe_u32 v{AVH}, v0, 5, 1
    v_lshlrev_b32 v{AVL16}, 4, v{AT+1}
    v_lshlrev_b32 v{AT+2}, 4, v{AVT}
    v_mov_b32 v{BK1}, v{AVL16}
    v_lshl_add_u32 v{BK2}, v{AVH}, 3, v{AT+2}
    v_add_u32 v{BK2}, 1024, v{BK2}
    v_mul_u32_u24 v{BV}, 384, v{AVH}
    v_add_u32 v{BV}, v{BV}, v{AT+2}
    v_add_u32 v{BV}, 1536, v{BV}
    v_cmp_eq_u32 s[26:27], 0, v{AVH}
    s_lshl_b32 s18, s14, 3
    s_add_u32 s18, s18, s12
    s_lshl_b32 s19, s13, 6
    s_add_u32 s19, s19, s18
    s_mul_i32 s19, s19, {QBLK}
    s_add_u32 s19, s19, {QF:#x}
    s_mul_i32 s20, s13, {HEADKV}
    s_add_u32 s20, s20, {KV:#x}
    s_mul_i32 s22, s12, {KVBLK}
    s_mov_b32 s40, 0x07060302
    s_mov_b32 s41, 0xffff0000
    s_waitcnt lgkmcnt(0)
    """)
    ws_srd(A, 8, 4)
    A(f"""
    s_add_u32 s32, s4, s20
    s_addc_u32 s33, s5, 0
    s_and_b32 s33, s33, 0xffff
    s_mov_b32 s34, {HEADKV}
    s_mov_b32 s35, 0x00020000
    """)
    A.vmem(f"buffer_load_dwordx4 {v(Q1R,4)}, v{AVL16}, s[8:11], s19 offen", "q")
    A.vmem(f"buffer_load_dwordx2 {v(Q2R,2)}, v{AT+2}, s[8:11], s19 offen offset:1024", "q")

def rowmax_to_bias(A, src):
    t = AT
    A(f"v_max3_f32 v{t}, v{src}, v{src+1}, v{src+2}")
    for i in range(3, 15, 2):
        A(f"v_max3_f32 v{t}, v{t}, v{src+i}, v{src+i+1}")
    A(f"v_max_f32 v{t}, v{t}, v{src+15}")
    bias_from(A, t)

def bias_from(A, t):
    A(f"""
    v_mov_b32 v{AT+1}, v{t}
    s_nop 1
    v_permlane32_swap_b32 v{t}, v{AT+1}
    s_nop 1
    v_max_f32 v{t}, v{t}, v{AT+1}
    v_sub_f32 v{t}, 0, v{t}
    """)
    split3(A, t, AT + 2, AT + 3, AT + 4, AT + 5, 40, 41)
    A(f"""
    v_cndmask_b32 v{Q2R}, v{AT+2}, v{Q2R}, s[26:27]
    v_cndmask_b32 v{Q2R+1}, v{AT+3}, v{Q2R+1}, s[26:27]
    """)

def zero_bias(A):
    A(f"""
    v_mov_b32 v{AT}, 0
    v_cndmask_b32 v{Q2R}, v{AT}, v{Q2R}, s[26:27]
    v_cndmask_b32 v{Q2R+1}, v{AT}, v{Q2R+1}, s[26:27]
    """)

def attn_epilogue(A, fb_label, store_label):
    t = AT
    A.nop(12)
    A(f"""
    v_mov_b32 v{t}, v{OACC+8}
    v_mov_b32 v{t+1}, v{OACC+8}
    s_mov_b32 s36, {f32(2.0**60):#x}
    s_nop 0
    v_permlane32_swap_b32 v{t}, v{t+1}
    s_nop 1
    v_cmp_nlt_f32 vcc, v{t+1}, s36
    s_cbranch_vccnz {fb_label}
    """.replace(f"v_cmp_nlt_f32 vcc, v{t+1}, s36", f"v_cmp_ngt_f32 vcc, s36, v{t+1}"))
    A.label(store_label)
    A(f"""
    v_rcp_f32 v{t+2}, v{t+1}
    s_mul_i32 s36, s13, 5
    s_mul_i32 s37, s18, {2*20*1024}
    s_add_u32 s37, s37, {OF:#x}
    v_add_u32 v{t+4}, s36, v{AVH}
    v_mov_b32 v{t+3}, v{t+2}
    v_lshrrev_b32 v{t+5}, 4, v{AVT}
    v_mul_u32_u24 v{t+5}, {20*1024}, v{t+5}
    v_and_b32 v{t+6}, 15, v{AVT}
    v_lshl_add_u32 v{t+5}, v{t+6}, 4, v{t+5}
    """)
    for i in range(3):
        r = OACC + 4 * i
        A(f"""
        v_pk_mul_f32 v[{r}:{r+1}], v[{r}:{r+1}], v[{t+2}:{t+3}]
        v_pk_mul_f32 v[{r+2}:{r+3}], v[{r+2}:{r+3}], v[{t+2}:{t+3}]
        v_add_u32 v{t+6}, {2*i}, v{t+4}
        v_lshrrev_b32 v{t+7}, 1, v{t+6}
        v_lshl_add_u32 v{t+7}, v{t+7}, 8, v{t+5}
        v_and_b32 v{t+6}, 1, v{t+6}
        v_lshl_add_u32 v{t+8+i}, v{t+6}, 3, v{t+7}
        v_cvt_pk_bf16_f32 v{r}, v{r}, v{r+1}
        v_cvt_pk_bf16_f32 v{r+1}, v{r+2}, v{r+3}
        """)
        if i == 2:
            A("s_mov_b64 exec, s[26:27]")
        A(f"buffer_store_dwordx2 v[{r}:{r+1}], v{t+8+i}, s[8:11], s37 offen")
    A("s_endpgm")

def emit_masks(A):
    A(f"v_mov_b32 v{AT+8}, 0")
    A(f"v_mov_b32 v{AT+9}, {NEG_BIG:#x}")
    A(f"v_lshlrev_b32 v{AT+10}, 2, v{AVH}")
    A(f"v_sub_u32 v{AT+10}, v{AVT}, v{AT+10}")
    for r in range(16):
        j = 8 * (r // 4) + r % 4
        sp = 44 + 2 * (r % 4)
        A(f"v_cmp_le_i32 s[{sp}:{sp+1}], {j}, v{AT+10}")
        if r % 4 == 3:
            for q in range(4):
                rr = r - 3 + q
                sq = 44 + 2 * q
                A(f"v_cndmask_b32 v{MSK_D+rr}, v{AT+9}, v{AT+8}, s[{sq}:{sq+1}]")
                A(f"v_cndmask_b32 v{MSK_F+rr}, v{AT+8}, v{AT+9}, s[{sq}:{sq+1}]")

def emit_fallback(A, label, store_label, sliding):
    A.label(label)
    A.vm = []; A.lg = []
    if sliding:
        A("""
        s_sub_u32 s44, s18, 8
        s_cmp_lt_u32 s18, 8
        s_cselect_b32 s44, 0, s44
        s_mov_b32 s45, s18
        """)
    else:
        A("""
        s_mov_b32 s44, 0
        s_mov_b32 s45, 63
        """)
    zero_bias(A)
    A(f"v_mov_b32 v{AT+12}, {NEG_BIG:#x}")
    for r in range(16):
        A(f"v_mov_b32 v{OACC+r}, 0")
    A("s_mov_b32 s47, 0")
    lp = A.newlabel("fbpass"); lt = A.newlabel("fbtile"); l2 = A.newlabel("fbp2"); ln = A.newlabel("fbnext")
    A.label(lp)
    A("s_mov_b32 s46, s44")
    A.label(lt)
    A(f"""
    s_mul_i32 s48, s46, {KVBLK}
    buffer_load_dwordx4 {v(K1R,4)}, v{BK1}, s[32:35], s48 offen
    buffer_load_dwordx2 {v(K2R,2)}, v{BK2}, s[32:35], s48 offen
    buffer_load_dwordx4 {v(V0R,4)}, v{BV}, s[32:35], s48 offen
    buffer_load_dwordx4 {v(V1R,4)}, v{BV}, s[32:35], s48 offen offset:768
    """)
    for r in range(16):
        A(f"v_mov_b32 v{CM+r}, 0")
    if sliding:
        lnd = A.newlabel("fbnd"); lnf = A.newlabel("fbnf")
        A(f"""
        s_cmp_lg_u32 s46, s18
        s_cbranch_scc1 {lnd}
        """)
        for r in range(16):
            A(f"v_mov_b32 v{CM+r}, v{MSK_D+r}")
        A.label(lnd)
        A(f"""
        s_add_u32 s49, s46, 8
        s_cmp_lg_u32 s49, s18
        s_cbranch_scc1 {lnf}
        """)
        for r in range(16):
            A(f"v_mov_b32 v{CM+r}, v{MSK_F+r}")
        A.label(lnf)
    A(f"""
    s_waitcnt vmcnt(0)
    s_nop 1
    v_mfma_f32_32x32x16_bf16 {v(S0,16)}, {v(K1R,4)}, {v(Q1R,4)}, {v(CM,16)}
    v_mfma_f32_32x32x8_bf16 {v(S0,16)}, {v(K2R,2)}, {v(Q2R,2)}, {v(S0,16)}
    s_nop 15
    s_cmp_lg_u32 s47, 0
    s_cbranch_scc1 {l2}
    """)
    for i in range(0, 16, 2):
        A(f"v_max3_f32 v{AT+12}, v{AT+12}, v{S0+i}, v{S0+i+1}")
    A(f"s_branch {ln}")
    A.label(l2)
    for r in range(16):
        A(f"v_exp_f32 v{S0+r}, v{S0+r}")
    A("s_nop 0")
    for i in range(8):
        A(f"v_cvt_pk_bf16_f32 v{PP+i}, v{S0+2*i}, v{S0+2*i+1}")
    A(f"""
    s_nop 1
    v_mfma_f32_32x32x16_bf16 {v(OACC,16)}, {v(V0R,4)}, {v(PP,4)}, {v(OACC,16)}
    v_mfma_f32_32x32x16_bf16 {v(OACC,16)}, {v(V1R,4)}, {v(PP+4,4)}, {v(OACC,16)}
    s_nop 15
    """)
    A.label(ln)
    ld = A.newlabel("fbdone")
    A(f"""
    s_add_u32 s46, s46, 1
    s_cmp_le_u32 s46, s45
    s_cbranch_scc1 {lt}
    s_cmp_lg_u32 s47, 0
    s_cbranch_scc1 {ld}
    s_mov_b32 s47, 1
    v_mov_b32 v{AT}, v{AT+12}
    """)
    bias_from(A, AT)
    A(f"s_branch {lp}")
    A.label(ld)
    t = AT
    A(f"""
    v_mov_b32 v{t}, v{OACC+8}
    v_mov_b32 v{t+1}, v{OACC+8}
    s_nop 1
    v_permlane32_swap_b32 v{t}, v{t+1}
    s_nop 1
    s_branch {store_label}
    """)

def first_tile_bias(A, koff, cmask):
    A.lds(f"ds_read_b128 {v(K1R,4)}, v{AK1} offset:{koff}", "k1")
    A.lds(f"ds_read_b64 {v(K2R,2)}, v{AK2} offset:{koff}", "k2")
    A.wait_lg_all()
    A(f"v_mfma_f32_32x32x16_bf16 {v(S1,16)}, {v(K1R,4)}, {v(Q1R,4)}, {cmask}")
    A(f"v_mfma_f32_32x32x8_bf16 {v(S1,16)}, {v(K2R,2)}, {v(Q2R,2)}, {v(S1,16)}")
    A(f"v_mfma_f32_32x32x16_bf16 {v(S0,16)}, {v(K1R,4)}, {v(Q1R,4)}, {cmask}")
    A.nop(11)
    rowmax_to_bias(A, S1)
    A.nop(2)
    A(f"v_mfma_f32_32x32x8_bf16 {v(S0,16)}, {v(K2R,2)}, {v(Q2R,2)}, {v(S0,16)}")

def emit_attn_full(A):
    kernel_begin(A, "attnf_kernel")
    kernels.append(("attnf_kernel", 152, 152, 64))
    A.vm = []; A.lg = []
    attn_setup(A, "L_af_exit")
    def dma(slot_s, src_s, tag):
        for i in range(3):
            A.vmem(f"buffer_load_dwordx4 v{AVL16}, s[32:35], {src_s} offen offset:{1024*i} lds", tag)
    A("s_mov_b32 m0, s22")
    A("s_nop 0")
    dma(None, "s22", "c0")
    A(f"s_add_u32 s23, s22, {CHUNK}")
    A("s_mov_b32 m0, s23")
    A("s_nop 0")
    dma(None, "s23", "c1")
    A(f"""
    v_mov_b32 v{AK1}, v{BK1}
    v_mov_b32 v{AK2}, v{BK2}
    v_mov_b32 v{AV}, v{BV}
    """)
    for r in range(16):
        A(f"v_mov_b32 v{OACC+r}, 0")
    for r in range(4, 8):
        A(f"v_mov_b32 v{PP+r}, 0")
    A.wait_vm("q")
    zero_bias(A)
    A.wait_vm("c0")
    A("s_barrier")
    first_tile_bias(A, 0, "0")
    A.lds(f"ds_read_b128 {v(K1R,4)}, v{AK1} offset:{KVBLK}", "k1")
    A.lds(f"ds_read_b64 {v(K2R,2)}, v{AK2} offset:{KVBLK}", "k2")
    A.lds(f"ds_read_b128 {v(V1R,4)}, v{AV} offset:768", "v1")
    A.lds(f"ds_read_b128 {v(V0R,4)}, v{AV}", "v0")
    A(f"""
    s_mov_b32 s24, 0
    s_mov_b32 s25, {CHUNK}
    s_mov_b32 s28, {2*CHUNK}
    s_add_u32 s29, s22, {2*CHUNK}
    """)
    A.nop(5)
    A.raw(".p2align 6")
    A.label("L_af_loop")
    lg0 = list(A.lg)
    def hook_k():
        lsk = A.newlabel("afskip")
        A(f"""
        s_waitcnt vmcnt(0)
        s_barrier
        v_add_u32 v{AK1}, s25, v{BK1}
        v_add_u32 v{AK2}, s25, v{BK2}
        s_cmp_ge_u32 s24, 6
        s_cbranch_scc1 {lsk}
        s_add_u32 m0, s28, s22
        s_nop 0
        buffer_load_dwordx4 v{AVL16}, s[32:35], s29 offen lds
        buffer_load_dwordx4 v{AVL16}, s[32:35], s29 offen offset:1024 lds
        buffer_load_dwordx4 v{AVL16}, s[32:35], s29 offen offset:2048 lds
        """)
        A.label(lsk)
    def hook_v():
        A(f"v_add_u32 v{AV}, s25, v{BV}")
    for i in range(8):
        cur, nxt = (S0, S1) if i % 2 == 0 else (S1, S0)
        hooks = {}
        if i == 6: hooks["a"] = hook_k
        if i == 7: hooks["b"] = hook_v
        attn_step(A, cur, nxt, "0", ((i + 2) % 8) * KVBLK, True, i * KVBLK, True, ((i + 1) % 8) * KVBLK, hooks)
    assert A.lg == lg0, (A.lg, lg0)
    A(f"""
    s_mov_b32 s25, s28
    s_add_u32 s28, s28, {CHUNK}
    s_cmp_ge_u32 s28, {3*CHUNK}
    s_cselect_b32 s28, 0, s28
    s_add_u32 s29, s29, {CHUNK}
    s_add_u32 s24, s24, 1
    s_cmp_lt_u32 s24, 8
    s_cbranch_scc1 L_af_loop
    """)
    A.wait_lg("v1")
    A(f"v_mfma_f32_32x32x16_bf16 {v(OACC,16)}, {v(V1R,4)}, {v(PP+4,4)}, {v(OACC,16)}")
    A.wait_lg_all()
    attn_epilogue(A, "L_af_fb", "L_af_store")
    A.label("L_af_exit")
    A("s_endpgm")
    emit_fallback(A, "L_af_fb", "L_af_store", False)

def emit_attn_slide(A):
    kernel_begin(A, "attns_kernel")
    kernels.append(("attns_kernel", 152, 152, 64))
    A.vm = []; A.lg = []
    attn_setup(A, "L_as_exit")
    A(f"""
    s_mul_i32 s23, s18, {KVBLK}
    s_sub_u32 s24, s23, {CHUNK}
    v_add_u32 v{AT+3}, s23, v{AVL16}
    v_add_u32 v{AT+4}, s24, v{AVL16}
    s_add_u32 m0, s22, {CHUNK}
    s_nop 0
    """)
    for i in range(3):
        A.vmem(f"buffer_load_dwordx4 v{AT+3}, s[32:35], 0 offen offset:{1024*i} lds", "c0")
    A("s_mov_b32 m0, s22")
    A("s_nop 0")
    for i in range(3):
        A.vmem(f"buffer_load_dwordx4 v{AT+4}, s[32:35], 0 offen offset:{1024*i} lds", "c0")
    A(f"""
    v_add_u32 v{AK1}, s22, v{BK1}
    v_add_u32 v{AK2}, s22, v{BK2}
    v_add_u32 v{AV}, s22, v{BV}
    """)
    for r in range(16):
        A(f"v_mov_b32 v{OACC+r}, 0")
    emit_masks(A)
    A.wait_vm("q")
    zero_bias(A)
    A.wait_vm("c0")
    A("s_barrier")
    order = list(range(8, -1, -1))
    first_tile_bias(A, order[0] * KVBLK, v(MSK_D, 16))
    A.lds(f"ds_read_b128 {v(K1R,4)}, v{AK1} offset:{order[1]*KVBLK}", "k1")
    A.lds(f"ds_read_b64 {v(K2R,2)}, v{AK2} offset:{order[1]*KVBLK}", "k2")
    A.lds(f"ds_read_b128 {v(V0R,4)}, v{AV} offset:{order[0]*KVBLK}", "v0")
    A.nop(8)
    n = len(order)
    for i in range(n):
        cur, nxt = (S0, S1) if i % 2 == 0 else (S1, S0)
        qk_c = None if i + 1 >= n else (v(MSK_F, 16) if order[i + 1] == 0 else "0")
        rdk = order[i + 2] * KVBLK if i + 2 < n else None
        attn_step(A, cur, nxt, qk_c, rdk, i > 0, order[i] * KVBLK, True,
                  order[i + 1] * KVBLK if i + 1 < n else None)
    A.wait_lg("v1")
    A.nop(1)
    A(f"v_mfma_f32_32x32x16_bf16 {v(OACC,16)}, {v(V1R,4)}, {v(PP+4,4)}, {v(OACC,16)}")
    attn_epilogue(A, "L_as_fb", "L_as_store")
    A.label("L_as_exit")
    A("s_endpgm")
    emit_fallback(A, "L_as_fb", "L_as_store", True)

def emit_oproj(A):
    for lab, wo, last in (("oproja_kernel", WO_A, 0), ("oprojb_kernel", WO_B, 0), ("oprojl_kernel", WO_B, 1)):
        kernel_begin(A, lab)
        kernels.append((lab, 176, 176, 64))
        A(f"""
        s_mov_b32 s40, {wo:#x}
        s_mov_b32 s41, {last}
        s_branch L_op
        """)
    A.raw(".p2align 6")
    A.label("L_op")
    A.vm = []; A.lg = []
    ACC = 0; BF = 20; OFR = 60; XO = 140; VL16 = 150; VB1 = 151; VX = 152; T = 154; VT = 166; VQ = 167
    A(f"""
    s_load_dwordx2 s[4:5], s[0:1], 64
    s_load_dwordx2 s[6:7], s[0:1], 48
    s_cmp_ge_u32 s2, 256
    s_cbranch_scc1 L_op_exit
    s_and_b32 s13, s2, 7
    s_lshr_b32 s14, s2, 3
    s_lshr_b32 s15, s13, 1
    s_lshl_b32 s15, s15, 3
    s_and_b32 s16, s14, 7
    s_add_u32 s15, s15, s16
    s_and_b32 s16, s13, 1
    s_lshl_b32 s16, s16, 2
    s_lshr_b32 s17, s14, 3
    s_add_u32 s16, s16, s17
    v_lshrrev_b32 v{T}, 6, v0
    v_and_b32 v{T+1}, 63, v0
    v_and_b32 v{VT}, 15, v0
    v_readfirstlane_b32 s12, v{T}
    v_bfe_u32 v{VQ}, v0, 4, 2
    v_lshlrev_b32 v{VL16}, 4, v{T+1}
    v_add_u32 v{VB1}, 0x10000, v{VL16}
    s_lshl_b32 s18, s15, 2
    s_add_u32 s18, s18, s12
    s_mul_i32 s20, s18, 20480
    s_add_u32 s20, s20, {OF:#x}
    s_lshl_b32 s22, s12, 10
    s_mul_i32 s21, s16, 102400
    s_add_u32 s21, s21, s40
    s_add_u32 s21, s21, s22
    s_lshr_b32 s23, s18, 1
    s_mul_i32 s23, s23, 40960
    s_mul_i32 s24, s16, 5120
    s_add_u32 s23, s23, s24
    s_add_u32 s23, s23, {XF:#x}
    s_add_u32 s29, s23, 4096
    s_and_b32 s24, s18, 1
    s_lshl_b32 s24, s24, 8
    v_and_b32 v{T+2}, 1, v{VQ}
    v_lshlrev_b32 v{VX}, 9, v{T+2}
    v_lshl_add_u32 v{VX}, v{VT}, 4, v{VX}
    v_lshrrev_b32 v{T+2}, 1, v{VQ}
    v_lshl_add_u32 v{VX}, v{T+2}, 3, v{VX}
    v_add_u32 v{VX}, s24, v{VX}
    s_waitcnt lgkmcnt(0)
    """)
    ws_srd(A, 8, 4)
    for c in range(5):
        A(f"s_add_u32 s24, s20, {c*4096}")
        for i in range(4):
            k = 4 * c + i
            A.vmem(f"buffer_load_dwordx4 v[{OFR+4*k}:{OFR+4*k+3}], v{VL16}, s[8:11], s24 offen offset:{1024*i}", f"c{c}")
        for i in range(5):
            off = c * 20480 + i * 4096
            A(f"s_add_u32 s25, s21, {off}")
            A(f"s_add_u32 m0, s22, {off}")
            A("s_nop 0")
            A.vmem(f"buffer_load_dwordx4 v{VL16}, s[8:11], s25 offen lds", f"c{c}")
    for cb in range(5):
        A.vmem(f"buffer_load_dwordx2 v[{XO+2*cb}:{XO+2*cb+1}], v{VX}, s[8:11], {'s23' if cb < 4 else 's29'} offen offset:{(cb%4)*1024}", "xo")
    def rd(sidx, cb):
        addr = sidx * 5120 + cb * 1024
        base = (VL16, VB1)[addr >> 16]
        r = BF + 20 * (sidx % 2) + 4 * cb
        A.lds(f"ds_read_b128 v[{r}:{r+3}], v{base} offset:{addr & 0xffff}", (sidx, cb))
    A.wait_vm("c0")
    A("s_barrier")
    for sidx in range(2):
        for cb in range(5):
            rd(sidx, cb)
    for sidx in range(20):
        nxt = sidx + 2
        if nxt < 20 and nxt % 4 == 0:
            A.wait_vm(f"c{nxt//4}")
            A("s_barrier")
        for cb in range(5):
            A.wait_lg((sidx, cb))
            acc = v(ACC + 4 * cb, 4)
            A(f"v_mfma_f32_16x16x32_bf16 {acc}, {v(BF+20*(sidx%2)+4*cb,4)}, {v(OFR+4*sidx,4)}, {acc if sidx else '0'}")
            if nxt < 20:
                rd(nxt, cb)
    A.wait_vm("xo")
    A(f"""
    s_mov_b32 s26, 0xffff0000
    v_mov_b32 v{T}, 0
    v_mov_b32 v{T+1}, 0
    """)
    A.nop(6)
    for cb in range(5):
        r = ACC + 4 * cb; x = XO + 2 * cb
        A(f"""
        v_cvt_pk_bf16_f32 v{T+2}, v{r}, v{r+1}
        v_cvt_pk_bf16_f32 v{T+3}, v{r+2}, v{r+3}
        v_lshlrev_b32 v{r}, 16, v{T+2}
        v_and_b32 v{r+1}, s26, v{T+2}
        v_lshlrev_b32 v{r+2}, 16, v{T+3}
        v_and_b32 v{r+3}, s26, v{T+3}
        v_lshlrev_b32 v{T+4}, 16, v{x}
        v_and_b32 v{T+5}, s26, v{x}
        v_lshlrev_b32 v{T+6}, 16, v{x+1}
        v_and_b32 v{T+7}, s26, v{x+1}
        v_add_f32 v{r}, v{r}, v{T+4}
        v_add_f32 v{r+1}, v{r+1}, v{T+5}
        v_add_f32 v{r+2}, v{r+2}, v{T+6}
        v_add_f32 v{r+3}, v{r+3}, v{T+7}
        v_cvt_pk_bf16_f32 v{x}, v{r}, v{r+1}
        v_cvt_pk_bf16_f32 v{x+1}, v{r+2}, v{r+3}
        """)
    A("""
    s_cmp_lg_u32 s41, 0
    s_cbranch_scc1 L_op_last
    """)
    for cb in range(5):
        x = XO + 2 * cb
        A(f"buffer_store_dwordx2 v[{x}:{x+1}], v{VX}, s[8:11], {'s23' if cb < 4 else 's29'} offen offset:{(cb%4)*1024}")
    for i in range(10):
        x = XO + i
        A(f"""
        v_lshlrev_b32 v{T+4}, 16, v{x}
        v_and_b32 v{T+5}, s26, v{x}
        v_add_f32 v{T}, v{T}, v{T+4}
        v_fmac_f32 v{T+1}, v{T+4}, v{T+4}
        v_add_f32 v{T}, v{T}, v{T+5}
        v_fmac_f32 v{T+1}, v{T+5}, v{T+5}
        """)
    A(f"""
    v_mov_b32 v{T+2}, v{T}
    v_mov_b32 v{T+3}, v{T+1}
    s_nop 1
    v_permlane32_swap_b32 v{T}, v{T+2}
    v_permlane32_swap_b32 v{T+1}, v{T+3}
    s_nop 1
    v_add_f32 v{T}, v{T}, v{T+2}
    v_add_f32 v{T+1}, v{T+1}, v{T+3}
    v_mov_b32 v{T+2}, v{T}
    v_mov_b32 v{T+3}, v{T+1}
    s_nop 1
    v_permlane16_swap_b32 v{T}, v{T+2}
    v_permlane16_swap_b32 v{T+1}, v{T+3}
    s_nop 1
    v_add_f32 v{T}, v{T}, v{T+2}
    v_add_f32 v{T+1}, v{T+1}, v{T+3}
    s_lshl_b32 s24, s18, 10
    s_lshl_b32 s25, s16, 3
    s_add_u32 s24, s24, s25
    s_add_u32 s24, s24, {ST:#x}
    v_lshlrev_b32 v{T+4}, 6, v{VT}
    s_mov_b64 exec, 0xffff
    buffer_store_dwordx2 v[{T}:{T+1}], v{T+4}, s[8:11], s24 offen
    """)
    A.label("L_op_exit")
    A("s_endpgm")
    A.label("L_op_last")
    A(f"""
    s_mov_b32 s32, s6
    s_and_b32 s33, s7, 0xffff
    s_mov_b32 s34, 2621440
    s_mov_b32 s35, 0x00020000
    s_mul_i32 s24, s18, {16*1280}
    s_mul_i32 s25, s16, 160
    s_add_u32 s24, s24, s25
    v_mul_u32_u24 v{T+4}, 1280, v{VT}
    v_lshl_add_u32 v{T+4}, v{VQ}, 3, v{T+4}
    """)
    for cb in range(5):
        x = XO + 2 * cb
        A(f"buffer_store_dwordx2 v[{x}:{x+1}], v{T+4}, s[32:35], s24 offen offset:{32*cb}")
    A("s_endpgm")

def build(extra_launches=()):
    global kernels
    kernels = []
    A = Asm()
    emit_prep(A)
    emit_qkv(A)
    emit_attn_full(A)
    emit_attn_slide(A)
    emit_oproj(A)
    body = A.text()
    errs = check_text(body)
    for e in errs:
        print("HAZARD", e, file=sys.stderr)
    ref = open(f"cdna_kernels/{NAME}.s.ref").read().split("\n")
    head = [l for l in ref if l.startswith(";") and "aunch" not in l]
    launches = [("prep_kernel", 564, 256, 8192)]
    for layer in range(4):
        ab = "ab"[layer % 2]
        launches.append((f"qkv{ab}_kernel", 256, 256, 163840))
        if layer % 2 == 0:
            launches.append(("attns_kernel", 256, 512, 16 * KVBLK + 1024))
        else:
            launches.append(("attnf_kernel", 256, 512, 3 * CHUNK + 1024))
        launches.append((f"oproj{'l' if layer == 3 else ab}_kernel", 256, 256, 102400))
    launches += list(extra_launches)
    out = head[:]
    for k, g, b, l in launches:
        out.append(f"; @launch kernel={k} grid=({g},1,1) block=({b},1,1) lds={l}")
    out.append('.amdgcn_target "amdgcn-amd-amdhsa--gfx950"')
    out.append(".text")
    out.append(body)
    out.append('.section .rodata,"a"')
    for lab, nv, acc, ns in kernels:
        out.append(f""".p2align 6
.amdhsa_kernel {lab}
  .amdhsa_next_free_vgpr {nv}
  .amdhsa_next_free_sgpr {ns}
  .amdhsa_accum_offset {acc}
  .amdhsa_group_segment_fixed_size 0
  .amdhsa_kernarg_size 72
  .amdhsa_user_sgpr_count 2
  .amdhsa_user_sgpr_kernarg_segment_ptr 1
  .amdhsa_system_sgpr_workgroup_id_x 1
  .amdhsa_float_denorm_mode_32 3
.end_amdhsa_kernel""")
    return "\n".join(out) + "\n", len(errs)

if __name__ == "__main__":
    text, nerr = build()
    path = sys.argv[1] if len(sys.argv) > 1 else f"cdna_kernels/{NAME}.s"
    open(path, "w").write(text)
    print("wrote", path, len(text), "bytes; hazards:", nerr)
```

```python
import sys, math, struct, os
from gen import *

NAME = "interleave_layers__sliding_block__mha_block__prompt"
STAMPS = int(os.environ.get("STAMPS", "0"))
CYC = [int(x) for x in os.environ.get("CYC", "7,8").split(",")]
FORCE_SAFE = int(os.environ.get("FORCE_SAFE", "0"))
SCRAMBLE = int(os.environ.get("SCRAMBLE", "0"))

XF0 = 0x0
QF0 = 0x280000
OM0 = 0x500000; OT_OFF = 0x200000
TS = 81920 + 128
KV_BYTES = 64 * TS
KV_STRIDE = 0x540000
KVL = 0x780000
KV0 = KVL + KV_STRIDE
WO_A = KVL + 4 * KV_STRIDE; WO_B = WO_A + 0xC8000
CS_A = WO_A + 0x190000; CS_B = CS_A + 0x8000
ST0 = CS_A + 0x10000
FL = ST0 + 0x20000
TF = FL; GF = FL + 0x1000; XM = FL + 0x2000
STAMP_BASE = 0x6000000
WS_BYTES = 0x10000000
LT = 3072
CHUNK = 8 * LT
POLL_MAX = 40000

def f32(x):
    return struct.unpack("<I", struct.pack("<f", x))[0]
QSCALE = f32(math.log2(math.e) / math.sqrt(20.0))
NEG_BIG = f32(-1e30)
kernels = []

def kernel_begin(A, label):
    A.raw(f".globl {label}")
    A.raw(".p2align 8")
    A.raw(f".type {label},@function")
    A.label(label)

def ws_srd(A, sreg, ptr):
    A(f"""
    s_mov_b32 s{sreg}, s{ptr}
    s_and_b32 s{sreg+1}, s{ptr+1}, 0xffff
    s_mov_b32 s{sreg+2}, {WS_BYTES:#x}
    s_mov_b32 s{sreg+3}, 0x00020000
    """)

def split3(A, x, d0, d1, t0, t1, ssel_hi, smask):
    A(f"""
    v_and_b32 v{t0}, s{smask}, v{x}
    v_sub_f32 v{t1}, v{x}, v{t0}
    v_and_b32 v{d1}, s{smask}, v{t1}
    v_perm_b32 v{d0}, v{d1}, v{t0}, s{ssel_hi}
    v_sub_f32 v{t1}, v{t1}, v{d1}
    v_lshrrev_b32 v{d1}, 16, v{t1}
    """)

def bf16_round(A, dst, src):
    A(f"""
    v_cvt_pk_bf16_f32 v{dst}, v{src}, v{src}
    v_and_b32 v{dst}, 0xffff0000, v{dst}
    """)

LOOPST = int(os.environ.get("LOOPST", "0"))
def loop_stamp(A, base):
    if STAMPS and LOOPST:
        for c in range(7):
            l = A.newlabel("lst")
            A(f"""
            s_cmp_lg_u32 s48, {c}
            s_cbranch_scc1 {l}
            s_cmp_lg_u32 s16, {STAMPS-1}
            s_cbranch_scc1 {l}
            s_memrealtime s[{64+2*(base+2*c)}:{65+2*(base+2*c)}]
            """)
            A.label(l)

def stamp(A, i):
    if STAMPS and LOOPST:
        if i == 7: i = 0
        elif i == 8: i = 15
        else: return
    if STAMPS:
        l = A.newlabel("st")
        A(f"""
        s_cmp_lg_u32 s16, {STAMPS-1}
        s_cbranch_scc1 {l}
        s_memrealtime s[{64+2*i}:{65+2*i}]
        """)
        if i == CYC[0]:
            A("s_memtime s[96:97]")
        if i == CYC[1]:
            A("s_memtime s[98:99]")
        A.label(l)

P_X0, P_CS0, P_WO0, P_C0, P_END = 0, 64, 94, 148, 150

def emit_prep(A):
    kernel_begin(A, "prep_kernel")
    kernels.append(("prep_kernel", 128, 128, 64))
    A("""
    s_load_dwordx4 s[4:7], s[0:1], 0
    s_load_dwordx2 s[20:21], s[0:1], 16
    s_load_dwordx4 s[24:27], s[0:1], 32
    s_load_dwordx2 s[28:29], s[0:1], 64
    s_mov_b32 s40, 0x05040100
    s_mov_b32 s41, 0x07060302
    s_mov_b32 s42, 0xffff0000
    s_mov_b32 s15, 0x00020000
    s_waitcnt lgkmcnt(0)
    """)
    ws_srd(A, 8, 28)
    A(f"""
    s_cmp_lt_u32 s2, {P_CS0}
    s_cbranch_scc1 L_prep_x
    s_cmp_lt_u32 s2, {P_WO0}
    s_cbranch_scc1 L_prep_cs
    s_cmp_lt_u32 s2, {P_C0}
    s_cbranch_scc1 L_prep_wo
    s_cmp_lt_u32 s2, {P_END}
    s_cbranch_scc1 L_prep_const
    s_endpgm
    """)
    A.label("L_prep_cs")
    A(f"""
    s_cmp_ge_u32 s2, {P_CS0+15}
    s_cselect_b32 s12, s24, s6
    s_cselect_b32 s13, s25, s7
    s_mov_b32 s30, {CS_A:#x}
    s_cselect_b32 s30, {CS_B:#x}, s30
    s_mov_b32 s31, {P_CS0}
    s_cselect_b32 s31, {P_CS0+15}, s31
    s_and_b32 s13, s13, 0xffff
    s_mov_b32 s14, 2457600
    s_sub_u32 s31, s2, s31
    s_lshl_b32 s32, s31, 8
    s_lshl_b32 s33, s31, 11
    s_add_u32 s30, s30, s33
    v_and_b32 v1, 15, v0
    v_lshrrev_b32 v2, 4, v0
    s_mov_b32 s35, {40*3840}
    v_mul_lo_u32 v3, v2, s35
    v_lshl_add_u32 v3, v1, 4, v3
    """)
    for j in range(8):
        A(f"v_mov_b32 v{8+j}, 0")
    for b in range(2):
        for i in range(20):
            A(f"s_add_u32 s33, s32, {(b*20+i)*3840}")
            A(f"buffer_load_dwordx4 v[{24+4*i}:{24+4*i+3}], v3, s[12:15], s33 offen")
        for i in range(20):
            A(f"s_waitcnt vmcnt({19-i})")
            for w in range(4):
                r = 24 + 4 * i + w
                A(f"""
                v_lshlrev_b32 v16, 16, v{r}
                v_and_b32 v17, s42, v{r}
                v_add_f32 v{8+2*w}, v{8+2*w}, v16
                v_add_f32 v{9+2*w}, v{9+2*w}, v17
                """)
    A("""
    v_lshlrev_b32 v4, 9, v2
    v_lshl_add_u32 v4, v1, 5, v4
    ds_write_b128 v4, v[8:11]
    ds_write_b128 v4, v[12:15] offset:16
    s_waitcnt lgkmcnt(0)
    s_barrier
    v_cmp_gt_u32 vcc, 128, v0
    s_and_saveexec_b64 s[36:37], vcc
    s_cbranch_execz L_prep_end
    v_lshlrev_b32 v4, 2, v0
    """)
    for g in range(16):
        A(f"ds_read_b32 v{24+g}, v4 offset:{g*512}")
    A("s_waitcnt lgkmcnt(0)")
    for g in range(1, 16):
        A(f"v_add_f32 v24, v24, v{24+g}")
    split3(A, 24, 8, 9, 16, 17, 41, 42)
    A("""
    v_mov_b32 v10, 0
    v_mov_b32 v11, 0
    v_lshrrev_b32 v5, 5, v0
    v_lshlrev_b32 v5, 9, v5
    v_and_b32 v6, 31, v0
    v_lshl_add_u32 v5, v6, 3, v5
    buffer_store_dwordx2 v[8:9], v5, s[8:11], s30 offen
    buffer_store_dwordx2 v[10:11], v5, s[8:11], s30 offen offset:256
    """)
    A.label("L_prep_end")
    A("s_endpgm")

    A.label("L_prep_wo")
    A(f"""
    s_cmp_ge_u32 s2, {P_WO0+27}
    s_cselect_b32 s12, s26, s20
    s_cselect_b32 s13, s27, s21
    s_mov_b32 s30, {WO_A:#x}
    s_cselect_b32 s30, {WO_B:#x}, s30
    s_mov_b32 s31, {P_WO0}
    s_cselect_b32 s31, {P_WO0+27}, s31
    s_and_b32 s13, s13, 0xffff
    s_mov_b32 s14, 819200
    s_sub_u32 s31, s2, s31
    s_mul_i32 s31, s31, 3
    v_mul_u32_u24 v1, 205, v0
    v_lshrrev_b32 v1, 14, v1
    v_mul_u32_u24 v2, 80, v1
    v_sub_u32 v2, v0, v2
    v_add_u32 v3, s31, v1
    v_mul_u32_u24 v4, 10240, v3
    v_lshl_add_u32 v4, v2, 4, v4
    v_mul_u32_u24 v5, 205, v2
    v_lshrrev_b32 v5, 11, v5
    v_mul_u32_u24 v6, 10, v5
    v_sub_u32 v6, v2, v6
    v_mul_u32_u24 v5, 102400, v5
    v_lshrrev_b32 v7, 1, v6
    v_lshl_add_u32 v5, v7, 10, v5
    v_and_b32 v7, 1, v6
    v_lshl_add_u32 v5, v7, 7, v5
    v_mul_u32_u24 v72, 205, v3
    v_lshrrev_b32 v72, 10, v72
    v_mul_u32_u24 v73, 5, v72
    v_sub_u32 v73, v3, v73
    v_cmp_lt_u32 s[44:45], 2, v73
    v_cmp_eq_u32 s[46:47], 2, v73
    v_subrev_u32 v74, 1, v73
    v_lshrrev_b32 v75, 2, v72
    v_cndmask_b32 v73, v73, v74, s[44:45]
    v_add_u32 v75, 16, v75
    v_and_b32 v76, 3, v72
    v_cndmask_b32 v72, v72, v75, s[46:47]
    v_cndmask_b32 v73, v73, v76, s[46:47]
    v_mul_u32_u24 v72, 5120, v72
    v_add_u32 v5, v5, v72
    v_lshl_add_u32 v5, v73, 8, v5
    v_cmp_gt_u32 vcc, 240, v0
    s_and_saveexec_b64 s[36:37], vcc
    v_cmp_gt_u32 vcc, 80, v3
    s_and_saveexec_b64 s[36:37], vcc
    s_cbranch_execz L_prep_end
    s_mov_b32 s32, 5120
    """)
    for i in range(8):
        A(f"buffer_load_dwordx4 v[{8+4*i}:{8+4*i+3}], v4, s[12:15], {'0' if i < 4 else 's32'} offen offset:{(i%4)*1280}")
    A("s_waitcnt vmcnt(0)")
    R, O = 8, 40
    for j in range(8):
        for p in range(4):
            A(f"v_perm_b32 v{O+4*j+p}, v{R+4*(2*p+1)+j//2}, v{R+4*(2*p)+j//2}, s{40 + (j & 1)}")
    for j in range(8):
        A(f"buffer_store_dwordx4 v[{O+4*j}:{O+4*j+3}], v5, s[8:11], s30 offen offset:{16*j}")
    A("s_endpgm")

    A.label("L_prep_x")
    A(f"""
    s_mov_b32 s12, s4
    s_and_b32 s13, s5, 0xffff
    s_mov_b32 s14, 2621440
    s_mul_i32 s32, s2, 40960
    s_add_u32 s33, s32, {XF0:#x}
    s_lshl_b32 s34, s2, 8
    s_add_u32 s34, s34, {ST0:#x}
    v_and_b32 v1, 31, v0
    v_lshrrev_b32 v2, 5, v0
    v_mul_u32_u24 v3, 1280, v1
    v_mul_u32_u24 v4, 160, v2
    v_add_u32 v3, v3, v4
    v_mul_u32_u24 v4, 5120, v2
    v_lshl_add_u32 v4, v1, 4, v4
    v_lshlrev_b32 v5, 14, v2
    v_lshl_add_u32 v5, v1, 3, v5
    v_mov_b32 v6, 0
    v_mov_b32 v7, 0
    """)
    for sl in range(5):
        R = 8 + 8 * sl
        A(f"""
        buffer_load_dwordx2 v[{R}:{R+1}], v3, s[12:15], s32 offen offset:{sl*32}
        buffer_load_dwordx2 v[{R+4}:{R+5}], v3, s[12:15], s32 offen offset:{sl*32+8}
        buffer_load_dwordx2 v[{R+2}:{R+3}], v3, s[12:15], s32 offen offset:{sl*32+16}
        buffer_load_dwordx2 v[{R+6}:{R+7}], v3, s[12:15], s32 offen offset:{sl*32+24}
        """)
    A("s_waitcnt vmcnt(0)")
    A("s_add_u32 s36, s33, 4096")
    for sl in range(5):
        R = 8 + 8 * sl
        so = "s33" if sl < 4 else "s36"
        off = (sl % 4) * 1024
        A(f"""
        buffer_store_dwordx4 v[{R}:{R+3}], v4, s[8:11], {so} offen offset:{off}
        buffer_store_dwordx4 v[{R+4}:{R+7}], v4, s[8:11], {so} offen offset:{off+512}
        """)
    for r in range(8, 48):
        A(f"""
        v_lshlrev_b32 v48, 16, v{r}
        v_and_b32 v49, s42, v{r}
        v_add_f32 v6, v6, v48
        v_fmac_f32 v7, v48, v48
        v_add_f32 v6, v6, v49
        v_fmac_f32 v7, v49, v49
        """)
    A("""
    buffer_store_dwordx2 v[6:7], v5, s[8:11], s34 offen
    s_endpgm
    """)

    A.label("L_prep_const")
    A(f"""
    s_cmp_eq_u32 s2, {P_C0}
    s_cbranch_scc0 L_prep_flags
    v_lshrrev_b32 v1, 6, v0
    v_and_b32 v2, 63, v0
    s_mov_b32 s31, {KV_STRIDE}
    v_mul_lo_u32 v1, v1, s31
    s_mov_b32 s31, {TS}
    v_mul_lo_u32 v2, v2, s31
    v_add_u32 v1, v1, v2
    s_mov_b32 s31, {KVL + 81920:#x}
    v_mov_b32 v12, 0x3f803f80
    v_mov_b32 v13, 0x3f803f80
    v_mov_b32 v14, 0x3f803f80
    v_mov_b32 v15, 0x3f803f80
    buffer_store_dwordx4 v[12:15], v1, s[8:11], s31 offen
    s_endpgm
    """)
    A.label("L_prep_flags")
    A(f"""
    v_lshlrev_b32 v1, 4, v0
    v_mov_b32 v12, 0
    v_mov_b32 v13, 0
    v_mov_b32 v14, 0
    v_mov_b32 v15, 0
    s_mov_b32 s31, {TF:#x}
    s_mov_b32 s32, {GF:#x}
    s_mov_b32 s33, {XM:#x}
    buffer_store_dwordx4 v[12:15], v1, s[8:11], s31 offen
    buffer_store_dwordx4 v[12:15], v1, s[8:11], s32 offen
    buffer_store_dwordx4 v[12:15], v1, s[8:11], s33 offen
    s_endpgm
    """)

VL16 = 255; VT = 254; VH = 253; VT4 = 252
VD0 = 249; VD1 = 250; VD2 = 251
BK2 = 246; BV0 = 247; BV1 = 248
VQ2 = 245; VW = 244; VPF = 243; VJ = 242; VS = 238
WO_LO = 61440; WO_HI = 76800
STG = 138

def wo_lds(sidx):
    return WO_HI + sidx * 5120 if sidx < 17 else WO_LO + (sidx - 17) * 5120

def poll(A, name, body_loads, cmps, tmp_s=37, first_done=False):
    lp = A.newlabel(name + "_p"); ld = A.newlabel(name + "_d"); lc = A.newlabel(name + "_c")
    if first_done:
        for t in cmps:
            A(t)
        A(f"s_cbranch_vccz {ld}")
    A(f"s_mov_b32 s{tmp_s}, {POLL_MAX}")
    A.label(lp)
    for t in body_loads:
        A(t)
    A("s_waitcnt vmcnt(0)")
    for t in cmps:
        A(t)
    A(f"""
    s_cbranch_vccz {ld}
    s_sub_u32 s{tmp_s}, s{tmp_s}, 1
    s_cmp_lg_u32 s{tmp_s}, 0
    s_cbranch_scc1 {lp}
    """)
    A.label(ld)

def poll_team(A, name):
    poll(A, name, [f"buffer_load_dword v{VS}, v{VT4}, s[8:11], s18 offen sc1"],
         [f"v_cmp_gt_u32 vcc, s17, v{VS}"])

def team_flag(A, name, wave):
    lskip = A.newlabel(name + "_sk"); lsafe = A.newlabel(name + "_sf"); lg = A.newlabel(name + "_g")
    A(f"""
    s_cmp_lg_u32 s12, {wave}
    s_cbranch_scc1 {lskip}
    s_mov_b64 exec, 1
    v_mov_b32 v{VS}, s17
    v_mov_b32 v{VS+1}, s19
    s_cmp_lg_u32 s15, 0
    s_cbranch_scc1 {lsafe}
    buffer_store_dword v{VS}, v{VS+1}, s[8:11], 0 offen
    s_branch {lg}
    """)
    A.label(lsafe)
    A(f"""
    buffer_wbl2 sc1
    s_waitcnt vmcnt(0)
    buffer_store_dword v{VS}, v{VS+1}, s[8:11], 0 offen sc1
    """)
    A.label(lg)
    A("s_mov_b64 exec, -1")
    A.label(lskip)

def find_mode(A, name):
    A(f"s_add_u32 s36, s18, {XM-TF:#x}")
    poll(A, name, [f"buffer_load_dword v{VS}, v{VT4}, s[8:11], s36 offen sc1"], [f"v_cmp_eq_u32 vcc, 0, v{VS}"])
    A(f"""
    s_add_u32 s36, s3, 1
    v_cmp_ne_u32 vcc, s36, v{VS}
    s_cmp_lg_u64 vcc, 0
    s_cselect_b32 s15, 1, {1 if FORCE_SAFE else 0}
    """)

def set_w_srd(A, nxt):
    A(f"""
    s_bitcmp{0 if nxt else 1}_b32 s16, 0
    s_cselect_b32 s20, s26, s24
    s_cselect_b32 s21, s27, s25
    s_and_b32 s21, s21, 0xffff
    """)

def w_dma(A, sidx):
    A(f"s_add_u32 m0, s63, {sidx*4096}")
    A(f"s_add_u32 s36, s61, {16*sidx*3840}")
    A.vmem(f"buffer_load_dwordx4 v{VW}, s[20:23], s36 offen lds", f"w{sidx}")

def w_stage(A, sidx, slot):
    A(f"s_add_u32 s36, s61, {16*sidx*3840}")
    A(f"buffer_load_dwordx4 v[{STG+4*slot}:{STG+4*slot+3}], v{VW}, s[20:23], s36 offen")

def w_unstage(A, sidx, slot, vbase):
    addr = sidx * 4096
    A(f"ds_write_b128 v{vbase + (addr >> 16)}, v[{STG+4*slot}:{STG+4*slot+3}] offset:{addr & 0xffff}")

NBG = 11
def bg_piece(A, n):
    if n == 10:
        A(f"""
        s_min_u32 s36, s12, 4
        s_lshl_b32 s36, s36, 10
        s_add_u32 m0, s36, {WO_HI + n*8192}
        s_add_u32 s36, s36, s62
        s_add_u32 s36, s36, {n*8192}
        """)
    else:
        A(f"s_add_u32 m0, s58, {n*8192}")
        A(f"s_add_u32 s36, s59, {n*8192}")
    A(f"buffer_load_dwordx4 v{VL16}, s[8:11], s36 offen lds")

def w_prefetch(A, srow32):
    A(f"s_mul_i32 s36, {srow32}, {32*3840}")
    A(f"buffer_load_dword v{VJ}, v{VPF}, s[20:23], s36 offen")

def wo_prefetch(A, wo_off):
    A(f"""
    s_lshr_b32 s36, s14, 2
    s_mul_i32 s36, s36, 102400
    s_and_b32 s37, s14, 3
    s_mul_i32 s37, s37, 25600
    s_add_u32 s36, s36, s37
    s_lshl_b32 s37, s12, 12
    s_add_u32 s36, s36, s37
    s_add_u32 s36, s36, {wo_off:#x}
    v_lshlrev_b32 v{VS+2}, 7, v{VT}
    buffer_load_dword v{VJ}, v{VS+2}, s[8:11], s36 offen
    """)

def emit_main_setup(A):
    kernel_begin(A, "main_kernel")
    kernels.append(("main_kernel", 256, 256, 100 if STAMPS else 72))
    A(f"""
    s_load_dwordx2 s[4:5], s[0:1], 64
    s_load_dwordx2 s[6:7], s[0:1], 48
    s_load_dwordx2 s[24:25], s[0:1], 8
    s_load_dwordx2 s[26:27], s[0:1], 32
    s_cmp_ge_u32 s2, 256
    s_cbranch_scc1 L_exit
    s_getreg_b32 s3, hwreg(HW_REG_XCC_ID, 0, 4)
    """)
    if SCRAMBLE:
        A("""
        s_lshr_b32 s13, s2, 5
        s_and_b32 s14, s2, 31
        """)
    else:
        A("""
        s_and_b32 s13, s2, 7
        s_lshr_b32 s14, s2, 3
        """)
    A(f"""
    v_lshrrev_b32 v1, 6, v0
    v_and_b32 v2, 63, v0
    v_and_b32 v{VT}, 31, v0
    v_readfirstlane_b32 s12, v1
    v_bfe_u32 v{VH}, v0, 5, 1
    v_lshlrev_b32 v{VL16}, 4, v2
    v_lshlrev_b32 v{VT4}, 2, v{VT}
    v_cmp_eq_u32 s[28:29], 0, v{VH}
    v_lshrrev_b32 v3, 4, v2
    v_bfe_u32 v4, v2, 2, 2
    v_xor_b32 v4, v3, v4
    v_mul_u32_u24 v{VW}, 3840, v3
    v_lshl_add_u32 v{VW}, v4, 6, v{VW}
    v_and_b32 v3, 48, v{VL16}
    v_add_u32 v{VW}, v{VW}, v3
    s_mov_b32 s15, 0
    s_mov_b32 s16, 0
    s_mov_b32 s17, 0
    s_lshl_b32 s18, s13, 7
    s_add_u32 s18, s18, {TF:#x}
    s_lshl_b32 s19, s14, 2
    s_add_u32 s19, s19, s18
    s_mov_b32 s38, {GF-TF:#x}
    s_mov_b32 s30, 0x07060302
    s_mov_b32 s31, 0xffff0000
    s_mov_b32 s22, 2457600
    s_mov_b32 s23, 0x00020000
    s_mov_b32 s34, {KV_BYTES}
    s_mov_b32 s35, 0x00020000
    s_and_b32 s36, s12, 3
    s_lshl_b32 s63, s36, 10
    s_mul_i32 s61, s36, {4*3840}
    s_lshr_b32 s36, s14, 1
    s_lshl_b32 s36, s36, 8
    s_add_u32 s61, s61, s36
    s_waitcnt lgkmcnt(0)
    """)
    ws_srd(A, 8, 4)
    set_w_srd(A, False)
    if STAMPS:
        for i in range(36):
            A(f"s_mov_b32 s{64+i}, 0")
    l1 = A.newlabel("nohelp")
    A(f"""
    s_cmp_lt_u32 s12, 4
    s_cbranch_scc1 {l1}
    s_cmp_ge_u32 s14, 30
    s_cbranch_scc1 {l1}
    """)
    A.vm = []
    for sidx in range(40):
        w_dma(A, sidx)
    A.label(l1)
    A(f"""
    s_cmp_lg_u32 s12, 0
    s_cbranch_scc1 L_noxm
    s_mov_b64 exec, 1
    s_add_u32 s36, s3, 1
    s_mov_b32 s37, {XM-TF:#x}
    v_mov_b32 v3, s36
    v_mov_b32 v4, s19
    buffer_store_dword v3, v4, s[8:11], s37 offen sc1
    s_mov_b64 exec, -1
    """)
    A.label("L_noxm")
    A(f"""
    s_cmp_lg_u32 s12, 1
    s_cbranch_scc1 L_notlb
    v_lshlrev_b32 v3, 19, v2
    buffer_load_dword v{VJ}, v3, s[8:11], 0 offen offset:64 sc1
    """)
    A.label("L_notlb")
    A(f"""
    s_lshr_b32 s36, s14, 1
    s_and_b32 s37, s14, 1
    s_mul_i32 s39, s36, 2560
    s_mul_i32 s40, s37, 1536
    s_add_u32 s40, s40, s39
    v_add_u32 v{VD0}, s40, v{VL16}
    s_add_u32 s41, s39, 1024
    v_lshlrev_b32 v3, 4, v{VT}
    v_add_u32 v4, s41, v3
    s_lshl_b32 s42, s37, 3
    v_add_u32 v{VQ2}, s42, v4
    s_lshl_b32 s43, s37, 2
    s_mul_i32 s44, s14, 320
    s_add_u32 s44, s44, 40960
    s_mov_b32 s45, 10240
    """)
    def vsrc(dst, u):
        A(f"""
        v_mul_u32_u24 v5, 3277, v{u}
        v_lshrrev_b32 v5, 16, v5
        v_mul_u32_u24 v6, 20, v5
        v_sub_u32 v6, v{u}, v6
        v_add_u32 v6, s43, v6
        v_subrev_u32 v7, 20, v6
        v_cmp_gt_u32 s[46:47], 20, v6
        v_mad_u32_u24 v5, v5, s45, 0
        s_nop 0
        v_cndmask_b32 v6, v7, v6, s[46:47]
        v_lshl_add_u32 v5, v6, 4, v5
        v_add_u32 v{dst}, s44, v5
        """)
    vsrc(8, VT)
    A(f"""
    v_cndmask_b32 v{VD1}, v8, v4, s[28:29]
    v_subrev_u32 v{VD1}, 1024, v{VD1}
    v_add_u32 v9, 32, v2
    """)
    vsrc(8, 9)
    A(f"""
    v_mov_b32 v10, 81920
    v_cmp_gt_u32 s[46:47], 48, v2
    s_nop 1
    v_cndmask_b32 v{VD2}, v10, v8, s[46:47]
    v_subrev_u32 v{VD2}, 2048, v{VD2}
    v_add_u32 v5, s42, v3
    v_add_u32 v5, 1024, v5
    v_mov_b32 v6, 2816
    v_cndmask_b32 v{BK2}, v6, v5, s[28:29]
    v_cmp_gt_u32 s[46:47], 20, v{VT}
    v_cmp_gt_u32 s[48:49], 28, v{VT}
    v_mov_b32 v7, 12
    v_mov_b32 v8, 4
    v_cndmask_b32 v7, v7, v8, s[48:49]
    """)
    for j, dst in ((0, BV0), (1, BV1)):
        A(f"""
        v_mul_u32_u24 v5, 20, v{VH}
        v_add_u32 v5, {96 + 40*j}, v5
        v_add_u32 v6, v5, v7
        v_and_b32 v6, 15, v6
        v_add_u32 v6, 176, v6
        v_add_u32 v5, v5, v{VT}
        v_cndmask_b32 v5, v6, v5, s[46:47]
        v_lshlrev_b32 v{dst}, 4, v5
        """)
    A(f"""
    s_lshr_b32 s36, s14, 1
    s_lshl_b32 s36, s36, 8
    v_lshrrev_b32 v5, 1, v2
    v_mul_u32_u24 v5, 3840, v5
    v_and_b32 v6, 1, v2
    v_lshl_add_u32 v5, v6, 7, v5
    v_add_u32 v{VPF}, s36, v5
    """)
    wo_prefetch(A, WO_A)
    A("""
    s_cmp_lg_u32 s12, 0
    s_cbranch_scc1 L_qkv
    """)
    find_mode(A, "m0")

def emit_qkv(A):
    ACC = 0; BF = 64; AR = 96; NAR = 24; WB = 192; NM = 196; RS = 198; CSR = 200; STR = 208; RSV = 208; TMP = 224
    A.label("L_qkv")
    A.vm = []; A.lg = []
    stamp(A, 0)
    A(f"""
    s_and_b32 s41, s16, 1
    s_cmp_eq_u32 s16, 3
    s_cselect_b32 s60, 2, s41
    s_mul_i32 s60, s60, {KV_STRIDE}
    s_add_u32 s60, s60, {KV0:#x}
    s_add_u32 s32, s4, s60
    s_addc_u32 s33, s5, 0
    s_and_b32 s33, s33, 0xffff
    s_cmp_ge_u32 s14, 30
    s_cbranch_scc1 L_qkv_done
    s_cmp_ge_u32 s12, 4
    s_cbranch_scc1 L_qkv_help
    s_and_b32 s39, s14, 1
    s_lshl_b32 s40, s13, 1
    s_add_u32 s39, s39, s40
    s_lshr_b32 s40, s14, 1
    s_lshl_b32 s42, s39, 2
    s_add_u32 s42, s42, s12
    s_lshl_b32 s43, s41, 15
    s_add_u32 s43, s43, {CS_A:#x}
    s_lshl_b32 s44, s40, 11
    s_add_u32 s43, s43, s44
    v_lshrrev_b32 v{TMP}, 1, v{VL16}
    """)
    for i in range(4):
        A.vmem(f"buffer_load_dwordx2 v[{CSR+2*i}:{CSR+2*i+1}], v{TMP}, s[8:11], s43 offen offset:{512*i}", "cs")
    A(f"""
    s_lshl_b32 s44, s42, 8
    s_add_u32 s44, s44, {ST0:#x}
    s_mul_i32 s45, s42, 40960
    s_add_u32 s45, s45, {XF0:#x}
    v_bfe_u32 v{TMP+1}, v{VL16}, 6, 2
    v_bfe_u32 v{TMP+2}, v{VL16}, 4, 2
    v_bfe_u32 v{TMP+3}, v{VL16}, 8, 1
    v_lshl_add_u32 v{TMP+4}, v{VH}, 2, v{TMP+1}
    v_lshlrev_b32 v{TMP+4}, 8, v{TMP+4}
    v_lshl_add_u32 v{TMP+4}, v{TMP+3}, 5, v{TMP+4}
    v_lshl_add_u32 v{TMP+4}, v{TMP+2}, 3, v{TMP+4}
    """)
    for cb in range(4):
        A(f"v_xor_b32 v{TMP+2}, {cb}, v{TMP+1}")
        A(f"v_lshl_add_u32 v{WB+cb}, v{TMP+2}, 6, v{TMP+4}")
    A(f"v_lshlrev_b32 v{TMP}, 3, v{VT}")
    lnp = A.newlabel("qkv_nopoll")
    A(f"""
    s_cmp_eq_u32 s16, 0
    s_cbranch_scc1 {lnp}
    """)
    poll_team(A, "qkv")
    A.label(lnp)
    stamp(A, 1)
    def aload(k):
        if k % 4 == 0:
            A(f"s_add_u32 s46, s45, {k*1024}")
        r = AR + 4 * (k % NAR)
        A.vmem(f"buffer_load_dwordx4 v[{r}:{r+3}], v{VL16}, s[8:11], s46 offen offset:{1024*(k%4)} sc1", f"a{k}")
    for i in range(8):
        A(f"s_add_u32 s47, s44, {i*16384}")
        A.vmem(f"buffer_load_dwordx2 v[{STR+2*i}:{STR+2*i+1}], v{TMP}, s[8:11], s47 offen sc1", "st")
    APRE = 12
    for k in range(APRE):
        aload(k)
    A("s_barrier")
    A.wait_vm("st")
    for i in range(1, 8):
        A(f"v_add_f32 v{STR}, v{STR}, v{STR+2*i}")
        A(f"v_add_f32 v{STR+1}, v{STR+1}, v{STR+2*i+1}")
    inv = f32(1.0 / 640.0)
    A(f"""
    v_mul_f32 v{TMP}, {inv:#x}, v{STR}
    v_mul_f32 v{TMP+1}, {inv:#x}, v{STR+1}
    v_fma_f32 v{TMP+1}, -v{TMP}, v{TMP}, v{TMP+1}
    v_max_f32 v{TMP+1}, 0, v{TMP+1}
    """)
    bf16_round(A, TMP + 1, TMP + 1)
    A(f"v_add_f32 v{TMP+1}, {f32(1e-5):#x}, v{TMP+1}")
    bf16_round(A, TMP + 1, TMP + 1)
    A(f"v_sqrt_f32 v{TMP+1}, v{TMP+1}")
    A(f"v_sub_f32 v{TMP}, 0, v{TMP}")
    bf16_round(A, TMP + 1, TMP + 1)
    A(f"""
    v_rcp_f32 v{RS}, v{TMP+1}
    v_cvt_pk_bf16_f32 v{NM}, v{TMP}, v{TMP}
    v_mov_b32 v{TMP+2}, 0
    v_and_b32 v{NM+1}, 0xffff, v{NM}
    v_cndmask_b32 v{NM}, v{TMP+2}, v{NM}, s[28:29]
    v_cndmask_b32 v{NM+1}, v{TMP+2}, v{NM+1}, s[28:29]
    s_sub_u32 s51, s60, {KVL:#x}
    s_cmp_ge_u32 s40, 10
    s_cbranch_scc1 L_qkv_v
    """)
    saved_vm = list(A.vm)

    def main(is_v):
        def rd(sidx, cb):
            if sidx in (16, 32):
                A(f"v_add_u32 v{WB+cb}, 0x10000, v{WB+cb}")
            r = BF + 16 * (sidx % 2) + 4 * cb
            off = (sidx % 16) * 4096
            A.lds(f"ds_read_b64_tr_b16 v[{r}:{r+1}], v{WB+cb} offset:{off}", (sidx, cb))
            A.lds(f"ds_read_b64_tr_b16 v[{r+2}:{r+3}], v{WB+cb} offset:{off+2048}", (sidx, cb))
        stamp(A, 2)
        for cb in range(4):
            rd(0, cb)
        for cb in range(4):
            acc = v(ACC + 16 * cb, 16); cs = v(CSR + 2 * cb, 2); nm = v(NM, 2)
            A(f"v_mfma_f32_32x32x8_bf16 {acc}, {nm if is_v else cs}, {cs if is_v else nm}, 0")
            rd(1, cb)
        nl = APRE
        for sidx in range(40):
            nxt = sidx + 2
            if nxt == 8:
                A("s_barrier")
            A.wait_vm(f"a{sidx}")
            for cb in range(4):
                A.wait_lg((sidx, cb))
                acc = v(ACC + 16 * cb, 16)
                bf = v(BF + 16 * (sidx % 2) + 4 * cb, 4)
                xa = v(AR + 4 * (sidx % NAR), 4)
                A(f"v_mfma_f32_32x32x16_bf16 {acc}, {xa if is_v else bf}, {bf if is_v else xa}, {acc}")
                if nxt < 40:
                    rd(nxt, cb)
                if cb in (1, 3) and nl < 40 and nl < sidx + NAR:
                    aload(nl); nl += 1
        assert nl == 40
        stamp(A, 3)
        A.nop(10)

    A(f"""
    s_mul_i32 s47, s42, 40960
    s_add_u32 s47, s47, {QF0:#x}
    s_mul_i32 s48, s42, {TS}
    s_add_u32 s48, s48, {KVL - 5*8192:#x}
    s_cmp_ge_u32 s40, 5
    s_cselect_b32 s47, s48, s47
    s_cselect_b32 s49, 1.0, {QSCALE:#x}
    s_lshl_b32 s48, s40, 13
    s_add_u32 s47, s47, s48
    s_add_u32 s48, s47, 4096
    v_mul_f32 v{RS}, s49, v{RS}
    s_add_u32 s49, s47, s51
    s_add_u32 s50, s48, s51
    v_mov_b32 v{RS+1}, v{RS}
    """)
    main(False)
    prev = None
    for cb in range(4):
        for g in (0, 2):
            r = ACC + 16 * cb + 4 * g
            for p in range(4):
                A(f"v_pk_mul_f32 v[{r+2*p}:{r+2*p+1}], v[{r+2*p}:{r+2*p+1}], v[{RS}:{RS+1}]")
            for p in range(4):
                A(f"v_cvt_pk_bf16_f32 v{r+p}, v{r+2*p}, v{r+2*p+1}")
            if prev is not None:
                A(prev)
            prev = f"""
            v_permlane32_swap_b32 v{r}, v{r+2}
            v_permlane32_swap_b32 v{r+1}, v{r+3}
            buffer_store_dwordx4 v[{r}:{r+3}], v{VL16}, s[8:11], {'s47' if cb < 2 else 's48'} offen offset:{(cb%2)*2048+g*512}
            """
    A(prev)
    lq = A.newlabel("qkv_q")
    A(f"""
    s_cmp_lt_u32 s40, 5
    s_cbranch_scc1 {lq}
    """)
    for cb in range(4):
        for g in (0, 2):
            r = ACC + 16 * cb + 4 * g
            A(f"buffer_store_dwordx4 v[{r}:{r+3}], v{VL16}, s[8:11], {'s49' if cb < 2 else 's50'} offen offset:{(cb%2)*2048+g*512} sc1")
    A("s_waitcnt vmcnt(8)")
    A("s_branch L_qkv_done")
    A.label(lq)
    A("s_waitcnt vmcnt(0)")
    A("s_branch L_qkv_done")

    A.label("L_qkv_v")
    A.vm = saved_vm; A.lg = []
    A(f"""
    s_mul_i32 s47, s42, {TS}
    s_lshl_b32 s48, s40, 11
    s_add_u32 s47, s47, s48
    s_add_u32 s47, s47, {KVL + 40960 - 10*2048:#x}
    s_add_u32 s48, s47, 20480
    s_add_u32 s49, s47, s51
    s_add_u32 s50, s48, s51
    v_mul_u32_u24 v{TMP+5}, 10240, v{VH}
    v_lshl_add_u32 v{TMP+5}, v{VT}, 4, v{TMP+5}
    v_lshlrev_b32 v{TMP+3}, 4, v{VH}
    """)
    for r in range(16):
        tok = 8 * (r // 4) + r % 4
        A(f"v_add_u32 v{TMP+4}, {4*tok}, v{TMP+3}")
        A.lds(f"ds_bpermute_b32 v{RSV+r}, v{TMP+4}, v{RS}", "bp")
        if r == 7:
            A.wait_lg_all()
    A.wait_lg_all()
    main(True)
    for cb in range(4):
        for j in range(2):
            r = ACC + 16 * cb + 8 * j
            for p in range(4):
                A(f"v_pk_mul_f32 v[{r+2*p}:{r+2*p+1}], v[{r+2*p}:{r+2*p+1}], v[{RSV+8*j+2*p}:{RSV+8*j+2*p+1}]")
            for p in range(4):
                A(f"v_cvt_pk_bf16_f32 v{r+p}, v{r+2*p}, v{r+2*p+1}")
            A(f"buffer_store_dwordx4 v[{r}:{r+3}], v{TMP+5}, s[8:11], {'s48' if j else 's47'} offen offset:{512*cb}")
    for cb in range(4):
        for j in range(2):
            r = ACC + 16 * cb + 8 * j
            A(f"buffer_store_dwordx4 v[{r}:{r+3}], v{TMP+5}, s[8:11], {'s50' if j else 's49'} offen offset:{512*cb} sc1")
    A("s_waitcnt vmcnt(8)")
    A("s_branch L_qkv_done")

    A.label("L_qkv_help")
    A.vm = []; A.lg = []
    lh0 = A.newlabel("h0")
    A(f"""
    s_cmp_eq_u32 s16, 0
    s_cbranch_scc1 {lh0}
    s_waitcnt vmcnt(0)
    """)
    A.label(lh0)
    A("""
    s_waitcnt vmcnt(25) lgkmcnt(0)
    s_barrier
    s_waitcnt vmcnt(0)
    s_barrier
    """)
    set_w_srd(A, True)
    A(f"""
    s_cmp_eq_u32 s16, 3
    s_cbranch_scc1 L_qkv_done
    """)
    for i in range(25):
        w_stage(A, 15 + i, i)
    A("""
    s_bitcmp1_b32 s16, 0
    s_cbranch_scc1 L_qkv_done
    s_sub_u32 s37, s12, 4
    """)
    w_prefetch(A, "s37")
    w_prefetch(A, "s12")
    A.label("L_qkv_done")
    stamp(A, 4)
    set_w_srd(A, True)
    A(f"""
    s_and_b32 s62, s16, 1
    s_mul_i32 s62, s62, {WO_B - WO_A}
    s_add_u32 s62, s62, {WO_A:#x}
    s_lshr_b32 s36, s14, 2
    s_mul_i32 s36, s36, 102400
    s_add_u32 s62, s62, s36
    """)
    lm = A.newlabel("mode")
    A(f"""
    s_cmp_lg_u32 s16, 0
    s_cbranch_scc1 {lm}
    s_cmp_lg_u32 s12, 4
    s_cbranch_scc1 {lm}
    """)
    find_mode(A, "m4")
    A.label(lm)
    A("""
    s_add_u32 s17, s17, 1
    s_barrier
    """)
    team_flag(A, "qkv", 4)
    stamp(A, 5)
    A.vm = []; A.lg = []
S0 = 0; S1 = 16; OACC = 32; PP = 48; K1R = 56; K2R = 60; Q2R = 62; Q1R = 64; V0R = 68; V1R = 72
AK1 = 76; AK2 = 77; AV0 = 78; AV1 = 79; AT = 80
HI = 132

def laddr(reg, off):
    if off >= 49152:
        return f"v{HI + reg - AK1} offset:{off - 32768}"
    return f"v{reg} offset:{off}"
MSK_D = 100; MSK_F = 116; CM = S1; FK2 = AT + 15; FV0 = AT + 16; FV1 = AT + 17

def attn_step(A, cur, nxt, qk_c, rdk, pv1, rdv1, pv0, rdv0, hooks=None):
    hooks = hooks or {}
    def ex(i):
        for r in range(4 * i, 4 * i + 4):
            A(f"v_exp_f32 v{cur+r}, v{cur+r}")
        A(f"v_cvt_pk_bf16_f32 v{PP+2*i}, v{cur+4*i}, v{cur+4*i+1}")
        A(f"v_cvt_pk_bf16_f32 v{PP+2*i+1}, v{cur+4*i+2}, v{cur+4*i+3}")
    if "a" in hooks: hooks["a"]()
    if qk_c is not None:
        A.wait_lg("k1")
        A(f"v_mfma_f32_32x32x16_bf16 {v(nxt,16)}, {v(K1R,4)}, {v(Q1R,4)}, {qk_c}")
    if rdk is not None:
        A.lds(f"ds_read_b128 {v(K1R,4)}, {laddr(AK1, rdk)}", "k1")
    ex(0)
    if qk_c is not None:
        A.wait_lg("k2")
        A(f"v_mfma_f32_32x32x8_bf16 {v(nxt,16)}, {v(K2R,2)}, {v(Q2R,2)}, {v(nxt,16)}")
    if rdk is not None:
        A.lds(f"ds_read_b64 {v(K2R,2)}, {laddr(AK2, rdk)}", "k2")
    ex(1)
    if pv1:
        A.wait_lg("v1")
        A(f"v_mfma_f32_32x32x16_bf16 {v(OACC,16)}, {v(V1R,4)}, {v(PP+4,4)}, {v(OACC,16)}")
    if rdv1 is not None:
        A.lds(f"ds_read_b128 {v(V1R,4)}, {laddr(AV1, rdv1)}", "v1")
    if "b" in hooks: hooks["b"]()
    ex(2)
    if "c" in hooks: hooks["c"]()
    if pv0:
        A.wait_lg("v0")
        A(f"v_mfma_f32_32x32x16_bf16 {v(OACC,16)}, {v(V0R,4)}, {v(PP,4)}, {v(OACC,16)}")
    if rdv0 is not None:
        A.lds(f"ds_read_b128 {v(V0R,4)}, {laddr(AV0, rdv0)}", "v0")
    ex(3)

def bias_from(A, t):
    A(f"""
    v_mov_b32 v{AT+1}, v{t}
    s_nop 1
    v_permlane32_swap_b32 v{t}, v{AT+1}
    s_nop 1
    v_max_f32 v{t}, v{t}, v{AT+1}
    v_sub_f32 v{t}, 0, v{t}
    """)
    split3(A, t, AT + 2, AT + 3, AT + 4, AT + 5, 30, 31)
    A(f"""
    v_cndmask_b32 v{Q2R}, v{AT+2}, v{Q2R}, s[28:29]
    v_cndmask_b32 v{Q2R+1}, v{AT+3}, v{Q2R+1}, s[28:29]
    """)

def rowmax_to_bias(A, src):
    t = AT
    A(f"v_max3_f32 v{t}, v{src}, v{src+1}, v{src+2}")
    for i in range(3, 15, 2):
        A(f"v_max3_f32 v{t}, v{t}, v{src+i}, v{src+i+1}")
    A(f"v_max_f32 v{t}, v{t}, v{src+15}")
    bias_from(A, t)

def zero_bias(A):
    A(f"""
    v_mov_b32 v{AT}, 0
    v_cndmask_b32 v{Q2R}, v{AT}, v{Q2R}, s[28:29]
    v_cndmask_b32 v{Q2R+1}, v{AT}, v{Q2R+1}, s[28:29]
    """)

def first_tile_bias(A, koff, cmask):
    A.lds(f"ds_read_b128 {v(K1R,4)}, v{AK1} offset:{koff}", "k1")
    A.lds(f"ds_read_b64 {v(K2R,2)}, v{AK2} offset:{koff}", "k2")
    A.wait_lg_all()
    A(f"v_mfma_f32_32x32x16_bf16 {v(S1,16)}, {v(K1R,4)}, {v(Q1R,4)}, {cmask}")
    A(f"v_mfma_f32_32x32x8_bf16 {v(S1,16)}, {v(K2R,2)}, {v(Q2R,2)}, {v(S1,16)}")
    A(f"v_mfma_f32_32x32x16_bf16 {v(S0,16)}, {v(K1R,4)}, {v(Q1R,4)}, {cmask}")
    A.nop(11)
    rowmax_to_bias(A, S1)
    A.nop(2)
    A(f"v_mfma_f32_32x32x8_bf16 {v(S0,16)}, {v(K2R,2)}, {v(Q2R,2)}, {v(S0,16)}")

def emit_masks(A):
    A(f"v_mov_b32 v{AT+8}, 0")
    A(f"v_mov_b32 v{AT+9}, {NEG_BIG:#x}")
    A(f"v_lshlrev_b32 v{AT+10}, 2, v{VH}")
    A(f"v_sub_u32 v{AT+10}, v{VT}, v{AT+10}")
    for r in range(16):
        j = 8 * (r // 4) + r % 4
        sp = 48 + 2 * (r % 4)
        A(f"v_cmp_le_i32 s[{sp}:{sp+1}], {j}, v{AT+10}")
        if r % 4 == 3:
            for q in range(4):
                rr = r - 3 + q; sq = 48 + 2 * q
                A(f"v_cndmask_b32 v{MSK_D+rr}, v{AT+9}, v{AT+8}, s[{sq}:{sq+1}]")
                A(f"v_cndmask_b32 v{MSK_F+rr}, v{AT+8}, v{AT+9}, s[{sq}:{sq+1}]")

def emit_fallback(A, label, store_label, sliding):
    A.label(label)
    A.vm = []; A.lg = []
    A("s_add_u32 s56, s18, s38")
    poll(A, "fbf", [flag_load(A, "s56")], [f"v_cmp_gt_u32 vcc, s57, v{VF}"])
    if sliding:
        A("""
        s_sub_u32 s46, s39, 8
        s_cmp_lt_u32 s39, 8
        s_cselect_b32 s46, 0, s46
        s_mov_b32 s47, s39
        """)
    else:
        A("""
        s_mov_b32 s46, 0
        s_mov_b32 s47, 63
        """)
    t = AT + 6
    A(f"""
    v_mov_b32 v{t}, 81920
    v_cndmask_b32 v{FK2}, v{t}, v{VQ2}, s[28:29]
    s_and_b32 s48, s14, 1
    s_lshl_b32 s48, s48, 2
    v_add_u32 v{t+1}, s48, v{VT}
    v_subrev_u32 v{t+2}, 20, v{t+1}
    v_cmp_gt_u32 s[50:51], 20, v{t+1}
    v_cmp_gt_u32 s[52:53], 20, v{VT}
    s_mul_i32 s48, s14, 320
    s_add_u32 s48, s48, 40960
    v_cndmask_b32 v{t+1}, v{t+2}, v{t+1}, s[50:51]
    v_mul_u32_u24 v{t+2}, 10240, v{VH}
    v_lshl_add_u32 v{t+1}, v{t+1}, 4, v{t+2}
    v_add_u32 v{t+1}, s48, v{t+1}
    v_add_u32 v{t+2}, 20480, v{t+1}
    v_cndmask_b32 v{FV0}, v{t}, v{t+1}, s[52:53]
    v_cndmask_b32 v{FV1}, v{t}, v{t+2}, s[52:53]
    """)
    zero_bias(A)
    A(f"v_mov_b32 v{AT+12}, {NEG_BIG:#x}")
    for r in range(16):
        A(f"v_mov_b32 v{OACC+r}, 0")
    A("s_mov_b32 s49, 0")
    lp = A.newlabel("fbpass"); lt = A.newlabel("fbtile"); l2 = A.newlabel("fbp2"); ln = A.newlabel("fbnext")
    A.label(lp)
    A("s_mov_b32 s48, s46")
    A.label(lt)
    A(f"""
    s_mul_i32 s50, s48, {TS}
    buffer_load_dwordx4 {v(K1R,4)}, v{VD0}, s[32:35], s50 offen sc1
    buffer_load_dwordx2 {v(K2R,2)}, v{FK2}, s[32:35], s50 offen sc1
    buffer_load_dwordx4 {v(V0R,4)}, v{FV0}, s[32:35], s50 offen sc1
    buffer_load_dwordx4 {v(V1R,4)}, v{FV1}, s[32:35], s50 offen sc1
    """)
    for r in range(16):
        A(f"v_mov_b32 v{CM+r}, 0")
    if sliding:
        lnd = A.newlabel("fbnd"); lnf = A.newlabel("fbnf")
        A(f"""
        s_cmp_lg_u32 s48, s39
        s_cbranch_scc1 {lnd}
        """)
        for r in range(16):
            A(f"v_mov_b32 v{CM+r}, v{MSK_D+r}")
        A.label(lnd)
        A(f"""
        s_add_u32 s51, s48, 8
        s_cmp_lg_u32 s51, s39
        s_cbranch_scc1 {lnf}
        """)
        for r in range(16):
            A(f"v_mov_b32 v{CM+r}, v{MSK_F+r}")
        A.label(lnf)
    A(f"""
    s_waitcnt vmcnt(0)
    s_nop 1
    v_mfma_f32_32x32x16_bf16 {v(S0,16)}, {v(K1R,4)}, {v(Q1R,4)}, {v(CM,16)}
    v_mfma_f32_32x32x8_bf16 {v(S0,16)}, {v(K2R,2)}, {v(Q2R,2)}, {v(S0,16)}
    s_nop 15
    s_cmp_lg_u32 s49, 0
    s_cbranch_scc1 {l2}
    """)
    for i in range(0, 16, 2):
        A(f"v_max3_f32 v{AT+12}, v{AT+12}, v{S0+i}, v{S0+i+1}")
    A(f"s_branch {ln}")
    A.label(l2)
    for r in range(16):
        A(f"v_exp_f32 v{S0+r}, v{S0+r}")
    A("s_nop 0")
    for i in range(8):
        A(f"v_cvt_pk_bf16_f32 v{PP+i}, v{S0+2*i}, v{S0+2*i+1}")
    A(f"""
    s_nop 1
    v_mfma_f32_32x32x16_bf16 {v(OACC,16)}, {v(V0R,4)}, {v(PP,4)}, {v(OACC,16)}
    v_mfma_f32_32x32x16_bf16 {v(OACC,16)}, {v(V1R,4)}, {v(PP+4,4)}, {v(OACC,16)}
    s_nop 15
    """)
    A.label(ln)
    A(f"""
    s_add_u32 s48, s48, 1
    s_cmp_le_u32 s48, s47
    s_cbranch_scc1 {lt}
    s_cmp_lg_u32 s49, 0
    s_cbranch_scc1 {store_label}
    s_mov_b32 s49, 1
    v_mov_b32 v{AT+13}, v{AT+4}
    v_mov_b32 v{AT+14}, v{AT+5}
    v_mov_b32 v{AT}, v{AT+12}
    """)
    bias_from(A, AT)
    A(f"""
    v_mov_b32 v{AT+4}, v{AT+13}
    v_mov_b32 v{AT+5}, v{AT+14}
    s_branch {lp}
    """)

VF = 136

def attn_common_pre(A):
    A(f"""
    s_lshl_b32 s39, s13, 3
    s_add_u32 s39, s39, s12
    s_mul_i32 s40, s39, 40960
    s_add_u32 s40, s40, {QF0:#x}
    s_mul_i32 s41, s12, {LT}
    s_mul_i32 s45, s39, {TS}
    s_add_u32 s45, s45, {KVL:#x}
    s_add_u32 s57, s16, 1
    s_lshl_b32 s36, s12, 10
    s_add_u32 s58, s36, {WO_HI}
    s_add_u32 s59, s36, s62
    """)
    for r in range(16):
        A(f"v_mov_b32 v{OACC+r}, 0")

def attn_wait(A, name):
    lw = A.newlabel(name + "_w"); lg = A.newlabel(name + "_g")
    l0 = A.newlabel(name + "_0")
    A(f"""
    s_cmp_ge_u32 s12, 4
    s_cbranch_scc1 {l0}
    s_waitcnt vmcnt(0)
    """)
    A.label(l0)
    A(f"""
    s_cmp_lg_u32 s12, 7
    s_cbranch_scc1 {lw}
    """)
    poll_team(A, name)
    A.label(lw)
    A(f"""
    s_barrier
    s_cmp_lg_u32 s12, 4
    s_cbranch_scc1 {lg}
    s_mov_b64 exec, 1
    v_mov_b32 v{VS}, s57
    v_mov_b32 v{VS+1}, s19
    buffer_store_dword v{VS}, v{VS+1}, s[8:11], s38 offen sc1
    s_mov_b64 exec, -1
    """)
    A.label(lg)
    A.vm = []
    A.vmem(f"buffer_load_dwordx4 {v(Q1R,4)}, v{VD0}, s[8:11], s40 offen sc1", "q")
    A.vmem(f"buffer_load_dwordx2 {v(Q2R,2)}, v{VQ2}, s[8:11], s40 offen sc1", "q")

def flag_load(A, steam):
    return f"buffer_load_dword v{VF}, v{VT4}, s[8:11], {steam} offen sc1"

def flag_check(A, name, steam):
    poll(A, name, [flag_load(A, steam)], [f"v_cmp_gt_u32 vcc, s57, v{VF}"], first_done=True)

def attn_epilogue(A, fb_label, store_label):
    t = AT
    stamp(A, 8)
    A(f"""
    s_mov_b32 s36, {f32(2.0**60):#x}
    s_lshl_b32 s43, s39, 15
    s_add_u32 s43, s43, {OM0:#x}
    s_lshl_b32 s44, s14, 9
    s_add_u32 s43, s43, s44
    s_lshl_b32 s44, s14, 14
    s_lshl_b32 s45, s39, 8
    s_add_u32 s44, s44, s45
    s_add_u32 s44, s44, {OM0 + OT_OFF:#x}
    v_lshrrev_b32 v{t+4}, 4, v{VT}
    v_lshlrev_b32 v{t+4}, 14, v{t+4}
    v_lshl_add_u32 v{t+4}, v{VH}, 8, v{t+4}
    v_and_b32 v{t+5}, 15, v{VT}
    v_lshl_add_u32 v{t+4}, v{t+5}, 4, v{t+4}
    v_lshlrev_b32 v{t+5}, 3, v{VT}
    v_cmp_ngt_f32 vcc, s36, v{OACC+12}
    s_cbranch_vccnz {fb_label}
    """)
    A.label(store_label)
    A(f"""
    v_rcp_f32 v{t+2}, v{OACC+12}
    s_nop 0
    v_mov_b32 v{t+3}, v{t+2}
    """)
    for p in range(6):
        A(f"v_pk_mul_f32 v[{OACC+2*p}:{OACC+2*p+1}], v[{OACC+2*p}:{OACC+2*p+1}], v[{t+2}:{t+3}]")
    for p in range(6):
        A(f"v_cvt_pk_bf16_f32 v{OACC+p}, v{OACC+2*p}, v{OACC+2*p+1}")
    A(f"""
    v_permlane32_swap_b32 v{OACC}, v{OACC+2}
    v_permlane32_swap_b32 v{OACC+1}, v{OACC+3}
    buffer_store_dwordx4 v[{OACC}:{OACC+3}], v{t+4}, s[8:11], s43 offen
    s_mov_b64 exec, s[28:29]
    buffer_store_dwordx2 v[{OACC+4}:{OACC+5}], v{t+5}, s[8:11], s44 offen
    s_mov_b64 exec, -1
    s_branch L_att_done
    """)

PRIO = [None, None, 2, None, 1, 0, 3, None]

def emit_attn_full(A):
    A.label("L_attf")
    A.vm = []; A.lg = []
    attn_common_pre(A)
    A(f"""
    v_mov_b32 v{AK1}, v{VL16}
    v_mov_b32 v{AK2}, v{BK2}
    v_mov_b32 v{AV0}, v{BV0}
    v_mov_b32 v{AV1}, v{BV1}
    v_add_u32 v{HI}, 0x8000, v{VL16}
    v_add_u32 v{HI+1}, 0x8000, v{BK2}
    v_add_u32 v{HI+2}, 0x8000, v{BV0}
    v_add_u32 v{HI+3}, 0x8000, v{BV1}
    s_mul_i32 s46, s12, {TS}
    s_add_u32 s55, s13, 1
    s_and_b32 s55, s55, 7
    s_lshl_b32 s56, s55, 7
    s_add_u32 s56, s56, {GF:#x}
    s_mov_b32 s42, {GF:#x}
    """)
    attn_wait(A, "af")
    stamp(A, 6)
    A("s_mov_b32 m0, s41")
    A("s_nop 0")
    for i, vd in enumerate((VD0, VD1, VD2)):
        A.vmem(f"buffer_load_dwordx4 v{vd}, s[8:11], s45 offen offset:{1024*i} sc1 lds", "c0")
    A.wait_vm("q")
    zero_bias(A)
    A.wait_vm("c0")
    A("s_barrier")
    stamp(A, 7)
    A.vmem(flag_load(A, "s56"), "f1")
    first_tile_bias(A, 0, "0")
    def toff(t):
        return ((t // 8) % 3) * CHUNK + (t % 8) * LT
    A.lds(f"ds_read_b128 {v(K1R,4)}, v{AK1} offset:{LT}", "k1")
    A.lds(f"ds_read_b64 {v(K2R,2)}, v{AK2} offset:{LT}", "k2")
    A.lds(f"ds_read_b128 {v(V0R,4)}, v{AV0}", "v0")
    A("s_setprio 3")
    A.nop(7)
    allf = f"buffer_load_dwordx4 v[{AT+4}:{AT+7}], v{VL16}, s[8:11], s42 offen sc1"
    allc = [f"v_min_u32 v{AT+4}, v{AT+4}, v{AT+5}",
            f"v_min3_u32 v{AT+4}, v{AT+4}, v{AT+6}, v{AT+7}",
            f"v_cmp_gt_u32 vcc, s57, v{AT+4}"]
    def src(c):
        A(f"""
        s_add_u32 s55, s13, {c}
        s_and_b32 s55, s55, 7
        s_mul_i32 s47, s55, {8*TS}
        s_add_u32 s47, s47, s46
        """)
    def piece(c, i):
        A(f"s_add_u32 m0, s41, {(c % 3) * CHUNK}")
        A("s_nop 0")
        A.vmem(f"buffer_load_dwordx4 v{(VD0, VD1, VD2)[i]}, s[32:35], s47 offen offset:{1024*i} sc1 lds", f"c{c}")
    def bg(fn):
        def f():
            fn()
            A.vm.append("bg")
        return f
    sched = {}
    def at(t, pos, fn):
        sched.setdefault((t, pos), []).append(fn)
    def early():
        A.wait_vm("f1")
        flag_check(A, "afe", "s56")
        src(1)
        for i in range(3):
            piece(1, i)
        A.vmem(allf, "fa")
    at(1, "b", early)
    for c in range(7):
        def hk(c=c):
            A.wait_vm(f"c{c+1}" if c else "fa")
            A("s_barrier")
            A(f"s_setprio {PRIO[6]}")
            if c == 0:
                poll(A, "afa", [allf], allc, first_done=True)
            if c + 2 < 8:
                src(c + 2)
        at(8 * c + 6, "a", hk)
        if c + 2 < 8:
            at(8 * c + 6, "b", lambda c=c: piece(c + 2, 0))
            at(8 * c + 7, "a", lambda c=c: piece(c + 2, 1))
            at(8 * c + 7, "b", lambda c=c: piece(c + 2, 2))
    n = 0
    for c in range(1, 7):
        for st in (1, 3):
            if n < NBG:
                at(8 * c + st, "b", bg(lambda n=n: bg_piece(A, n)))
                n += 1
    at(8 * 6 + 4, "b", bg(lambda: w_prefetch(A, "s12")))
    at(8 * 6 + 5, "b", bg(lambda: wo_prefetch(A, WO_A)))
    for t in range(64):
        i = t % 8
        cur, nxt = (S0, S1) if t % 2 == 0 else (S1, S0)
        hooks = {}
        for pos in "abc":
            if (t, pos) in sched:
                hooks[pos] = (lambda fs: (lambda: [f() for f in fs]))(sched[(t, pos)])
        if t >= 56:
            pr = {56: 3, 60: 2, 62: 1, 63: 0}.get(t)
        else:
            pr = PRIO[i] if i != 6 else None
        if pr is not None:
            A(f"s_setprio {pr}")
        attn_step(A, cur, nxt, "0" if t + 1 < 64 else None, toff(t + 2) if t + 2 < 64 else None,
                  t > 0, toff(t), True, toff(t + 1) if t + 1 < 64 else None, hooks)
    A.wait_lg("v1")
    A.nop(1)
    A(f"v_mfma_f32_32x32x16_bf16 {v(OACC,16)}, {v(V1R,4)}, {v(PP+4,4)}, {v(OACC,16)}")
    attn_epilogue(A, "L_af_fb", "L_af_store")
    emit_fallback(A, "L_af_fb", "L_af_store", False)

def emit_attn_slide(A):
    A.label("L_atts")
    A.vm = []; A.lg = []
    attn_common_pre(A)
    A(f"""
    s_sub_u32 s47, s45, {KVL + 8*TS:#x}
    s_add_u32 s56, s13, 7
    s_and_b32 s56, s56, 7
    s_lshl_b32 s56, s56, 7
    s_add_u32 s56, s56, {GF:#x}
    v_add_u32 v{AT+12}, s47, v{VD0}
    v_add_u32 v{AT+13}, s47, v{VD1}
    v_add_u32 v{AT+14}, s47, v{VD2}
    v_add_u32 v{AK1}, s41, v{VL16}
    v_add_u32 v{AK2}, s41, v{BK2}
    v_add_u32 v{AV0}, s41, v{BV0}
    v_add_u32 v{AV1}, s41, v{BV1}
    """)
    emit_masks(A)
    attn_wait(A, "as")
    stamp(A, 6)
    A(f"s_add_u32 m0, s41, {CHUNK}")
    A("s_nop 0")
    for i, vd in enumerate((VD0, VD1, VD2)):
        A.vmem(f"buffer_load_dwordx4 v{vd}, s[8:11], s45 offen offset:{1024*i} sc1 lds", "c0")
    A.vmem(flag_load(A, "s56"), "f")
    A.wait_vm("q")
    zero_bias(A)
    A.wait_vm("c0")
    order = list(range(8, -1, -1))
    first_tile_bias(A, order[0] * LT, v(MSK_D, 16))
    lz = A.newlabel("as_z")
    A.wait_vm("f")
    A(f"""
    s_cmp_eq_u32 s13, 0
    s_cbranch_scc1 {lz}
    """)
    flag_check(A, "asf", "s56")
    A.label(lz)
    A("s_mov_b32 m0, s41")
    A("s_nop 0")
    for i in range(3):
        A.vmem(f"buffer_load_dwordx4 v{AT+12+i}, s[32:35], 0 offen offset:{1024*i} sc1 lds", "c1")
    A("s_waitcnt vmcnt(0)")
    A("s_barrier")
    stamp(A, 7)
    A.lds(f"ds_read_b128 {v(K1R,4)}, v{AK1} offset:{order[1]*LT}", "k1")
    A.lds(f"ds_read_b64 {v(K2R,2)}, v{AK2} offset:{order[1]*LT}", "k2")
    A.lds(f"ds_read_b128 {v(V0R,4)}, v{AV0} offset:{order[0]*LT}", "v0")
    n = len(order)
    sprio = {0: 3, 4: 2, 6: 1, 7: 0}
    for i in range(n):
        cur, nxt = (S0, S1) if i % 2 == 0 else (S1, S0)
        qk_c = None if i + 1 >= n else (v(MSK_F, 16) if order[i + 1] == 0 else "0")
        rdk = order[i + 2] * LT if i + 2 < n else None
        if i in sprio:
            A(f"s_setprio {sprio[i]}")
        hooks = {}
        for q, pos in enumerate("ab"):
            if 2 * i + q < NBG:
                hooks[pos] = (lambda k: (lambda: bg_piece(A, k)))(2 * i + q)
        attn_step(A, cur, nxt, qk_c, rdk, i > 0, order[i] * LT, True, order[i + 1] * LT if i + 1 < n else None, hooks)
    A.wait_lg("v1")
    A.nop(1)
    A(f"v_mfma_f32_32x32x16_bf16 {v(OACC,16)}, {v(V1R,4)}, {v(PP+4,4)}, {v(OACC,16)}")
    attn_epilogue(A, "L_as_fb", "L_as_store")
    emit_fallback(A, "L_as_fb", "L_as_store", True)

def emit_oproj(A):
    ACC = 0; BF = 20; OFR = 60; XO = 140; VB1 = 152; VB2 = 153; VX = 154; VTL = 155; T = 156; V16 = 176; VQ = 177
    A.label("L_att_done")
    stamp(A, 9)
    A("""
    s_add_u32 s17, s17, 1
    s_waitcnt vmcnt(0) lgkmcnt(0)
    s_barrier
    """)
    team_flag(A, "att", 0)
    A.vm = []; A.lg = []
    stamp(A, 10)
    A(f"""
    s_and_b32 s39, s14, 3
    s_lshr_b32 s40, s14, 2
    s_cmp_ge_u32 s12, 4
    s_cbranch_scc1 L_op_help
    s_lshl_b32 s41, s13, 4
    s_lshl_b32 s42, s39, 2
    s_add_u32 s41, s41, s42
    s_add_u32 s41, s41, s12
    s_lshl_b32 s43, s41, 14
    s_add_u32 s43, s43, {OM0:#x}
    s_lshl_b32 s44, s41, 7
    s_add_u32 s44, s44, {OM0 + OT_OFF:#x}
    s_lshr_b32 s45, s41, 1
    s_mul_i32 s45, s45, 40960
    s_mul_i32 s46, s40, 5120
    s_add_u32 s45, s45, s46
    s_add_u32 s45, s45, {XF0:#x}
    s_add_u32 s46, s45, 4096
    s_and_b32 s47, s41, 1
    s_lshl_b32 s47, s47, 8
    v_bfe_u32 v{V16}, v{VL16}, 4, 4
    v_lshrrev_b32 v{VQ}, 8, v{VL16}
    v_add_u32 v{VB1}, 0x10000, v{VL16}
    v_add_u32 v{VB2}, 0x20000, v{VL16}
    v_lshlrev_b32 v{VX}, 9, v{VQ}
    v_lshl_add_u32 v{VX}, v{V16}, 4, v{VX}
    v_add_u32 v{VX}, s47, v{VX}
    v_lshlrev_b32 v{VTL}, 15, v{VQ}
    v_lshl_add_u32 v{VTL}, v{V16}, 3, v{VTL}
    v_and_b32 v{T}, 1, v{VQ}
    v_lshlrev_b32 v{T+1}, 9, v{T}
    v_lshl_add_u32 v{T+1}, v{V16}, 4, v{T+1}
    v_lshrrev_b32 v{T}, 1, v{VQ}
    v_lshl_add_u32 v{T+1}, v{T}, 3, v{T+1}
    v_add_u32 v{T+1}, s47, v{T+1}
    """)
    for cb in range(5):
        A(f"buffer_load_dwordx2 v[{XO+2*cb}:{XO+2*cb+1}], v{T+1}, s[8:11], {'s45' if cb < 4 else 's46'} offen offset:{(cb%4)*1024} sc1")
    def rd(sidx, cb):
        addr = wo_lds(sidx) + cb * 1024
        base = (VL16, VB1, VB2)[addr >> 16]
        r = BF + 20 * (sidx % 2) + 4 * cb
        A.lds(f"ds_read_b128 v[{r}:{r+3}], v{base} offset:{addr & 0xffff}", (sidx, cb))
    for sidx in range(2):
        for cb in range(5):
            rd(sidx, cb)
    A("s_waitcnt vmcnt(0)")
    for i in range(10):
        A(f"v_lshlrev_b32 v{ACC+2*i}, 16, v{XO+i}")
        A(f"v_and_b32 v{ACC+2*i+1}, s31, v{XO+i}")
    poll_team(A, "op")
    stamp(A, 11)
    def oload(k):
        if k < 16:
            if k % 4 == 0:
                A(f"s_add_u32 s47, s43, {k*1024}")
            A.vmem(f"buffer_load_dwordx4 v[{OFR+4*k}:{OFR+4*k+3}], v{VL16}, s[8:11], s47 offen offset:{1024*(k%4)} sc1", f"o{k}")
        else:
            A(f"s_add_u32 s47, s44, {(k-16)*131072}")
            A(f"s_add_u32 s48, s44, {(k-16)*131072 + 16384}")
            A.vmem(f"buffer_load_dwordx2 v[{OFR+4*k}:{OFR+4*k+1}], v{VTL}, s[8:11], s47 offen sc1", f"o{k}")
            A.vmem(f"buffer_load_dwordx2 v[{OFR+4*k+2}:{OFR+4*k+3}], v{VTL}, s[8:11], s48 offen sc1", f"o{k}")
    OPRE = 10
    for k in range(OPRE):
        oload(k)
    A("s_barrier")
    stamp(A, 12)
    nl = OPRE
    for sidx in range(20):
        nxt = sidx + 2
        A.wait_vm(f"o{sidx}")
        for cb in range(5):
            A.wait_lg((sidx, cb))
            acc = v(ACC + 4 * cb, 4)
            A(f"v_mfma_f32_16x16x32_bf16 {acc}, {v(BF+20*(sidx%2)+4*cb,4)}, {v(OFR+4*sidx,4)}, {acc}")
            if nxt < 20:
                rd(nxt, cb)
            if cb in (1, 3) and nl < 20:
                oload(nl); nl += 1
    lnb = A.newlabel("opnb")
    A(f"""
    s_cmp_eq_u32 s16, 3
    s_cbranch_scc1 {lnb}
    s_barrier
    """)
    A.label(lnb)
    stamp(A, 13)
    A.nop(5)
    for cb in range(5):
        r = ACC + 4 * cb
        A(f"v_cvt_pk_bf16_f32 v{XO+2*cb}, v{r}, v{r+1}")
        A(f"v_cvt_pk_bf16_f32 v{XO+2*cb+1}, v{r+2}, v{r+3}")
    A("s_nop 0")
    for gi in range(3):
        A(f"v_permlane32_swap_b32 v{XO+4*gi}, v{XO+4*gi+2}")
        A(f"v_permlane32_swap_b32 v{XO+4*gi+1}, v{XO+4*gi+3}")
    A(f"""
    s_cmp_eq_u32 s16, 3
    s_cbranch_scc1 L_op_last
    buffer_store_dwordx4 v[{XO}:{XO+3}], v{VX}, s[8:11], s45 offen
    buffer_store_dwordx4 v[{XO+4}:{XO+7}], v{VX}, s[8:11], s45 offen offset:2048
    s_mov_b64 exec, s[28:29]
    buffer_store_dwordx4 v[{XO+8}:{XO+11}], v{VX}, s[8:11], s46 offen
    s_mov_b64 exec, -1
    v_pk_add_f32 v[{T}:{T+1}], v[{ACC}:{ACC+1}], v[{ACC+2}:{ACC+3}]
    v_pk_mul_f32 v[{T+2}:{T+3}], v[{ACC}:{ACC+1}], v[{ACC}:{ACC+1}]
    v_pk_fma_f32 v[{T+2}:{T+3}], v[{ACC+2}:{ACC+3}], v[{ACC+2}:{ACC+3}], v[{T+2}:{T+3}]
    """)
    for i in range(2, 10):
        r = ACC + 2 * i
        A(f"v_pk_add_f32 v[{T}:{T+1}], v[{T}:{T+1}], v[{r}:{r+1}]")
        A(f"v_pk_fma_f32 v[{T+2}:{T+3}], v[{r}:{r+1}], v[{r}:{r+1}], v[{T+2}:{T+3}]")
    A(f"""
    v_add_f32 v{T}, v{T}, v{T+1}
    v_add_f32 v{T+1}, v{T+2}, v{T+3}
    v_mov_b32 v{T+2}, v{T}
    v_mov_b32 v{T+3}, v{T+1}
    s_lshl_b32 s47, s40, 14
    s_lshl_b32 s48, s41, 7
    v_permlane32_swap_b32 v{T}, v{T+2}
    v_permlane32_swap_b32 v{T+1}, v{T+3}
    s_add_u32 s47, s47, s48
    s_add_u32 s47, s47, {ST0:#x}
    v_add_f32 v{T}, v{T}, v{T+2}
    v_add_f32 v{T+1}, v{T+1}, v{T+3}
    v_mov_b32 v{T+2}, v{T}
    v_mov_b32 v{T+3}, v{T+1}
    v_lshlrev_b32 v{T+4}, 3, v{V16}
    s_nop 0
    v_permlane16_swap_b32 v{T}, v{T+2}
    v_permlane16_swap_b32 v{T+1}, v{T+3}
    s_nop 0
    v_add_f32 v{T}, v{T}, v{T+2}
    v_add_f32 v{T+1}, v{T+1}, v{T+3}
    s_mov_b64 exec, 0xffff
    buffer_store_dwordx2 v[{T}:{T+1}], v{T+4}, s[8:11], s47 offen
    s_mov_b64 exec, -1
    s_waitcnt vmcnt(0)
    s_branch L_op_done
    """)
    A.label("L_op_last")
    A(f"""
    s_mov_b32 s20, s6
    s_and_b32 s21, s7, 0xffff
    s_mov_b32 s22, 2621440
    s_mul_i32 s47, s41, {16*1280}
    s_mul_i32 s48, s40, 160
    s_add_u32 s47, s47, s48
    v_mul_u32_u24 v{T+4}, 1280, v{V16}
    v_lshrrev_b32 v{T+5}, 1, v{VQ}
    v_lshl_add_u32 v{T+4}, v{T+5}, 5, v{T+4}
    v_and_b32 v{T+5}, 1, v{VQ}
    v_lshl_add_u32 v{T+4}, v{T+5}, 3, v{T+4}
    """)
    for gi in range(3):
        if gi == 2:
            A("s_mov_b64 exec, s[28:29]")
        A(f"buffer_store_dwordx2 v[{XO+4*gi}:{XO+4*gi+1}], v{T+4}, s[20:23], s47 offen offset:{64*gi}")
        A(f"buffer_store_dwordx2 v[{XO+4*gi+2}:{XO+4*gi+3}], v{T+4}, s[20:23], s47 offen offset:{64*gi+16}")
    A("s_mov_b64 exec, -1")
    A("s_branch L_fin")

    A.label("L_op_help")
    A.vm = []; A.lg = []
    A(f"""
    s_add_u32 s41, s62, s63
    s_add_u32 s41, s41, {85*1024}
    s_add_u32 s42, s63, {WO_LO}
    """)
    lh = A.newlabel("oph")
    for n in range(4):
        if n == 3:
            A(f"""
            s_cmp_eq_u32 s12, 7
            s_cbranch_scc1 {lh}
            """)
        A(f"s_add_u32 m0, s42, {n*4096}")
        A(f"s_add_u32 s43, s41, {n*4096}")
        A.vmem(f"buffer_load_dwordx4 v{VL16}, s[8:11], s43 offen lds", "wo")
    A.label(lh)
    A(f"""
    v_add_u32 v0, s63, v{VL16}
    v_add_u32 v1, 0x10000, v0
    v_add_u32 v2, 0x20000, v0
    s_waitcnt vmcnt(0)
    s_barrier
    s_cmp_eq_u32 s16, 3
    s_cbranch_scc1 L_fin
    """)
    for sidx in range(15):
        w_dma(A, sidx)
    A("s_barrier")
    for i in range(10):
        w_unstage(A, 15 + i, i, 0)
    A.label("L_op_done")
    stamp(A, 14)
    A("""
    s_add_u32 s17, s17, 1
    s_barrier
    """)
    team_flag(A, "op", 0)
    stamp(A, 15)
    lu = A.newlabel("unst")
    A(f"""
    s_cmp_lt_u32 s12, 4
    s_cbranch_scc1 {lu}
    """)
    for i in range(10, 25):
        w_unstage(A, 15 + i, i, 0)
    A.label(lu)
    A("""
    s_add_u32 s16, s16, 1
    s_branch L_qkv
    """)
    A.label("L_fin")
    if STAMPS:
        A(f"""
        s_mov_b64 exec, 1
        s_waitcnt vmcnt(0) lgkmcnt(0)
        s_lshl_b32 s36, s2, 3
        s_add_u32 s36, s36, s12
        s_lshl_b32 s36, s36, 7
        s_add_u32 s36, s36, {STAMP_BASE:#x}
        v_mov_b32 v0, 0
        s_sub_u32 s65, s98, s96
        """)
        for i in range(16):
            A(f"""
            v_mov_b32 v2, s{64+2*i}
            v_mov_b32 v3, s{65+2*i}
            buffer_store_dwordx2 v[2:3], v0, s[8:11], s36 offen offset:{8*i}
            s_waitcnt vmcnt(0)
            """)
    A.label("L_exit")
    A("s_endpgm")

def build():
    global kernels
    kernels = []
    A = Asm()
    emit_prep(A)
    emit_main_setup(A)
    emit_qkv(A)
    A("""
    s_bitcmp1_b32 s16, 0
    s_cbranch_scc1 L_attf
    """)
    emit_attn_slide(A)
    emit_attn_full(A)
    emit_oproj(A)
    body = A.text()
    errs = check_text(body)
    for e in errs:
        print("HAZARD", e, file=sys.stderr)
    ref = open(f"cdna_kernels/{NAME}.s.ref").read().split("\n")
    out = [l for l in ref if l.startswith(";") and "aunch" not in l]
    for k, g, b, l in (("prep_kernel", P_END, 256, 8192), ("main_kernel", 256, 512, 163840)):
        out.append(f"; @launch kernel={k} grid=({g},1,1) block=({b},1,1) lds={l}")
    out.append('.amdgcn_target "amdgcn-amd-amdhsa--gfx950"')
    out.append(".text")
    out.append(body)
    out.append('.section .rodata,"a"')
    for lab, nv, acc, ns in kernels:
        out.append(f""".p2align 6
.amdhsa_kernel {lab}
  .amdhsa_next_free_vgpr {nv}
  .amdhsa_next_free_sgpr {ns}
  .amdhsa_accum_offset {acc}
  .amdhsa_group_segment_fixed_size 0
  .amdhsa_kernarg_size 72
  .amdhsa_user_sgpr_count 2
  .amdhsa_user_sgpr_kernarg_segment_ptr 1
  .amdhsa_system_sgpr_workgroup_id_x 1
  .amdhsa_float_denorm_mode_32 3
.end_amdhsa_kernel""")
    return "\n".join(out) + "\n", len(errs)

if __name__ == "__main__":
    text, nerr = build()
    path = sys.argv[1] if len(sys.argv) > 1 else f"cdna_kernels/{NAME}.s"
    open(path, "w").write(text)
    print("wrote", path, len(text), "bytes; hazards:", nerr)
```

```python
import re

TRANS = ("v_exp_f32", "v_log_f32", "v_rcp_f32", "v_rsq_f32", "v_sqrt_f32", "v_sin_f32", "v_cos_f32",
         "v_rcp_iflag_f32", "v_exp_f16")

def v(i, n=1):
    return f"v{i}" if n == 1 else f"v[{i}:{i+n-1}]"
def a(i, n=1):
    return f"a{i}" if n == 1 else f"a[{i}:{i+n-1}]"
def s(i, n=1):
    return f"s{i}" if n == 1 else f"s[{i}:{i+n-1}]"

_REG = re.compile(r"^(-|abs\()?\s*([vas])(\d+|\[(\d+):(\d+)\])\)?$")

def regs_of(op):
    op = op.strip()
    if op in ("vcc",):
        return {("s", "vcc")}
    if op in ("exec",):
        return {("s", "exec")}
    if op == "m0":
        return {("s", "m0")}
    m = _REG.match(op)
    if not m:
        return set()
    k = m.group(2)
    if m.group(4) is not None:
        return {(k, i) for i in range(int(m.group(4)), int(m.group(5)) + 1)}
    return {(k, int(m.group(3)))}

def split_ops(rest):
    out, depth, cur = [], 0, ""
    for ch in rest:
        if ch in "[(":
            depth += 1
        if ch in "])":
            depth -= 1
        if ch == "," and depth == 0:
            out.append(cur.strip()); cur = ""
        else:
            cur += ch
    if cur.strip():
        out.append(cur.strip())
    return out

class Ins:
    def __init__(self, text):
        self.text = text
        t = text.split(";")[0].strip()
        parts = t.split(None, 1)
        self.mn = parts[0]
        rest = parts[1] if len(parts) > 1 else ""
        ops = split_ops(rest)
        if ops:
            last = ops[-1].split()
            self.mods = last[1:]
            ops[-1] = last[0] if last else ""
        else:
            self.mods = []
        self.ops = ops
        mn = self.mn
        self.kind = "other"
        self.w = set(); self.r = set()
        self.srcA = self.srcB = self.srcC = set()
        self.passes = 0
        self.states = 1
        if mn == "s_nop":
            self.kind = "salu"; self.states = int(ops[0], 0) + 1
        elif mn.startswith("v_mfma"):
            self.kind = "mfma"
            self.w = regs_of(ops[0]); self.srcA = regs_of(ops[1]); self.srcB = regs_of(ops[2]); self.srcC = regs_of(ops[3])
            self.r = self.srcA | self.srcB | self.srcC
            self.passes = 8 if "32x32" in mn else 4
        elif mn.startswith("v_"):
            self.kind = "valu"
            if mn.startswith("v_cmp"):
                self.w = regs_of(ops[0])
                for o in ops[1:]: self.r |= regs_of(o)
                if mn.startswith("v_cmpx"): self.w |= {("s", "exec")}
            elif mn.startswith("v_permlane") and "swap" in mn:
                self.w = regs_of(ops[0]) | regs_of(ops[1]); self.r = set(self.w)
            elif mn.startswith(("v_add_co", "v_sub_co", "v_addc_co", "v_subb_co")):
                self.w = regs_of(ops[0]) | regs_of(ops[1])
                for o in ops[2:]: self.r |= regs_of(o)
            else:
                self.w = regs_of(ops[0])
                for o in ops[1:]: self.r |= regs_of(o)
                if mn.startswith(("v_fmac", "v_dot2c", "v_pk_fmac")): self.r |= self.w
        elif mn.startswith(("buffer_", "global_")):
            self.kind = "vmem"
            lds = "lds" in self.mods
            if "load" in mn and not lds:
                self.w = regs_of(ops[0])
                for o in ops[1:]: self.r |= regs_of(o)
            else:
                for o in ops: self.r |= regs_of(o)
                if lds: self.r |= {("s", "m0")}
            self.lds = lds
            self.store_data = regs_of(ops[0]) if ("store" in mn and mn.startswith("buffer_")) else set()
            self.wide_store = "store" in mn and ("x3" in mn or "x4" in mn)
        elif mn.startswith("ds_"):
            self.kind = "ds"
            if mn.startswith(("ds_read", "ds_bpermute", "ds_permute", "ds_swizzle")):
                self.w = regs_of(ops[0])
                for o in ops[1:]: self.r |= regs_of(o)
            else:
                for o in ops: self.r |= regs_of(o)
        elif mn.startswith("s_"):
            self.kind = "salu"
            if mn.startswith(("s_cmp", "s_cbranch", "s_branch", "s_waitcnt", "s_barrier", "s_endpgm", "s_setprio", "s_sleep", "s_bitcmp")):
                for o in ops: self.r |= regs_of(o)
            else:
                if ops: self.w = regs_of(ops[0])
                for o in ops[1:]: self.r |= regs_of(o)
                if "saveexec" in mn: self.w |= {("s", "exec")}
        self.trans = mn.split("_e32")[0].split("_e64")[0] in TRANS

def vec(rs):
    return {x for x in rs if x[0] in "va"}
def sca(rs):
    return {x for x in rs if x[0] == "s"}

def required(p, c):
    need = 0
    if p.kind == "valu":
        pw = vec(p.w); ps = sca(p.w)
        if c.kind == "mfma" and pw & c.r: need = max(need, 2)
        if c.kind == "valu" and c.mn.startswith("v_permlane") and pw & c.r: need = max(need, 2)
        if c.kind == "valu" and c.mn.startswith(("v_readfirstlane", "v_readlane")) and pw & c.r: need = max(need, 1)
        if c.kind == "valu" and any(m.startswith(("row_", "quad_perm", "wave_")) for m in c.mods) and pw & c.r: need = max(need, 2)
        if p.trans and c.kind == "valu" and not c.trans and pw & c.r: need = max(need, 1)
        if p.trans and c.kind in ("vmem", "ds") and pw & c.r: need = max(need, 1)
        if ps:
            if c.kind == "vmem" and ps & c.r: need = max(need, 5)
            if c.kind == "valu" and ps & c.r:
                need = max(need, 4 if c.mn.startswith(("v_readlane", "v_writelane")) else 2)
            if ("s", "exec") in ps and c.kind == "mfma": need = max(need, 4)
            if ("s", "exec") in ps and c.kind == "valu" and c.mn.startswith(("v_readfirstlane", "v_readlane", "v_permlane")): need = max(need, 4)
    if p.kind == "mfma":
        n_full = {4: 8, 8: 12}[p.passes]
        n_c = {4: 6, 8: 10}[p.passes]
        n_war = {4: 3, 8: 7}[p.passes]
        if c.kind == "mfma":
            if p.w & (c.srcA | c.srcB): need = max(need, n_full)
            if p.w & c.srcC:
                if not (p.w == c.srcC and p.passes == c.passes): need = max(need, n_c)
            elif p.w & c.w:
                need = max(need, n_c)
        elif c.kind in ("valu", "vmem", "ds"):
            if p.w & (c.r | c.w): need = max(need, n_full)
            if vec(p.srcC) & vec(c.w) and c.kind == "valu": need = max(need, n_war)
    if p.kind == "salu" and ("s", "m0") in p.w and c.kind == "vmem" and getattr(c, "lds", False): need = max(need, 1)
    if p.kind == "vmem" and getattr(p, "wide_store", False):
        if p.store_data & vec(c.w): need = max(need, 2 if c.kind == "valu" else 1)
    return need

def check_seq(seq, name=""):
    errs = []
    n = len(seq)
    for i, p in enumerate(seq):
        if p.kind not in ("valu", "mfma", "salu", "vmem"):
            continue
        dist = 0
        for j in range(i + 1, min(n, i + 24)):
            c = seq[j]
            need = required(p, c)
            if need > dist:
                errs.append(f"{name}: need {need} have {dist}: [{p.text.strip()}] -> [{c.text.strip()}]")
            dist += c.states
            if dist >= 20:
                break
    return errs

class Asm:
    def __init__(self):
        self.lines = []
        self.labels = {}
        self.vm = []
        self.lg = []
        self.uid = 0
    def __call__(self, text):
        for ln in text.strip("\n").split("\n"):
            ln = ln.strip()
            if ln:
                self.lines.append("    " + ln)
    def label(self, name):
        self.lines.append(f"{name}:")
    def newlabel(self, base):
        self.uid += 1
        return f"L_{base}_{self.uid}"
    def raw(self, text):
        self.lines.append(text)
    def comment(self, text):
        self.lines.append(f"    ; {text}")
    def vmem(self, text, tag=None):
        self(text); self.vm.append(tag)
    def wait_vm(self, tag):
        if tag not in self.vm:
            return
        idx = max(i for i, t in enumerate(self.vm) if t == tag)
        n = len(self.vm) - 1 - idx
        assert n <= 63, n
        self(f"s_waitcnt vmcnt({n})")
        self.vm = self.vm[idx + 1:]
    def wait_vm_all(self):
        self("s_waitcnt vmcnt(0)"); self.vm = []
    def lds(self, text, tag=None):
        self(text); self.lg.append(tag)
    def wait_lg(self, tag):
        idxs = [i for i, t in enumerate(self.lg) if t == tag]
        if not idxs:
            return
        idx = max(idxs)
        n = min(len(self.lg) - 1 - idx, 15)
        self(f"s_waitcnt lgkmcnt({n})")
        self.lg = self.lg[len(self.lg) - n:] if n else []
    def wait_lg_all(self):
        self("s_waitcnt lgkmcnt(0)"); self.lg = []
    def nop(self, states):
        while states > 0:
            k = min(states, 16)
            self(f"s_nop {k-1}")
            states -= k
    def text(self):
        return "\n".join(self.lines) + "\n"

def check_text(text):
    items = []
    labels = {}
    for ln in text.split("\n"):
        t = ln.split(";")[0].strip()
        if not t or t.startswith("."):
            continue
        if t.endswith(":"):
            labels[t[:-1]] = len(items)
            continue
        items.append(Ins(t))
    errs = []
    seg = []
    for it in items:
        seg.append(it)
        if it.mn in ("s_endpgm", "s_branch", "s_setpc_b64"):
            errs += check_seq(seg, "lin"); seg = []
    errs += check_seq(seg, "lin")
    for i, it in enumerate(items):
        if it.mn.startswith(("s_cbranch", "s_branch")):
            tgt = labels.get(it.ops[0])
            if tgt is None:
                continue
            pre = items[max(0, i - 24): i + 1]
            post = items[tgt: tgt + 24]
            cut = []
            for x in post:
                cut.append(x)
                if x.mn in ("s_endpgm", "s_branch"):
                    break
            e = check_seq(pre + cut, f"br {it.ops[0]}")
            errs += [x for x in e]
    return sorted(set(errs))
```

```python
import sys, math, struct, os
from gen import *

NAME = "interleave_layers__sliding_block__mha_block__prompt"
STAMPS = int(os.environ.get("STAMPS", "0"))
CYC = [int(x) for x in os.environ.get("CYC", "7,8").split(",")]
LAST = int(os.environ.get("LAST", "3"))
FB_THR = float(os.environ.get("FB_THR", str(2.0**60)))
FORCE_SAFE = int(os.environ.get("FORCE_SAFE", "0"))
SCRAMBLE = int(os.environ.get("SCRAMBLE", "0"))

XF0 = 0x0
QF0 = 0x280000
OM0 = 0x500000; OT_OFF = 0x200000
TS = 81920 + 128
KV_BYTES = 64 * TS
KV_STRIDE = 0x540000
KVL = 0x780000
KV0 = KVL + KV_STRIDE
WO_A = KVL + 4 * KV_STRIDE; WO_B = WO_A + 0xC8000
CS_A = WO_A + 0x190000; CS_B = CS_A + 0x10000
ST0 = CS_A + 0x20000
FL = ST0 + 0x20000
TF = FL; GF = FL + 0x400; SF = FL + 0x800
STAMP_BASE = 0x6000000
WS_BYTES = 0x10000000
LT = 3072
CHUNK = 8 * LT
POLL_MAX = 40000

def f32(x):
    return struct.unpack("<I", struct.pack("<f", x))[0]
QSCALE = f32(math.log2(math.e) / math.sqrt(20.0))
NEG_BIG = f32(-1e30)
kernels = []

def kernel_begin(A, label):
    A.raw(f".globl {label}")
    A.raw(".p2align 8")
    A.raw(f".type {label},@function")
    A.label(label)

def ws_srd(A, sreg, ptr):
    A(f"""
    s_mov_b32 s{sreg}, s{ptr}
    s_and_b32 s{sreg+1}, s{ptr+1}, 0xffff
    s_mov_b32 s{sreg+2}, {WS_BYTES:#x}
    s_mov_b32 s{sreg+3}, 0x00020000
    """)

def split3(A, x, d0, d1, t0, t1, ssel_hi, smask):
    A(f"""
    v_and_b32 v{t0}, s{smask}, v{x}
    v_sub_f32 v{t1}, v{x}, v{t0}
    v_and_b32 v{d1}, s{smask}, v{t1}
    v_perm_b32 v{d0}, v{d1}, v{t0}, s{ssel_hi}
    v_sub_f32 v{t1}, v{t1}, v{d1}
    v_lshrrev_b32 v{d1}, 16, v{t1}
    """)

def bf16_round(A, dst, src):
    A(f"""
    v_cvt_pk_bf16_f32 v{dst}, v{src}, v{src}
    v_and_b32 v{dst}, 0xffff0000, v{dst}
    """)

LOOPST = int(os.environ.get("LOOPST", "0"))
def loop_stamp(A, base):
    if STAMPS and LOOPST:
        for c in range(7):
            l = A.newlabel("lst")
            A(f"""
            s_cmp_lg_u32 s48, {c}
            s_cbranch_scc1 {l}
            s_cmp_lg_u32 s16, {STAMPS-1}
            s_cbranch_scc1 {l}
            s_memrealtime s[{64+2*(base+2*c)}:{65+2*(base+2*c)}]
            """)
            A.label(l)

def stamp(A, i):
    if STAMPS and LOOPST:
        if i == 7: i = 0
        elif i == 8: i = 15
        else: return
    if STAMPS == 1 and i in (9, 12):
        return
    if STAMPS:
        l = A.newlabel("st")
        A(f"""
        s_cmp_lg_u32 s16, {STAMPS-1}
        s_cbranch_scc1 {l}
        s_memrealtime s[{64+2*i}:{65+2*i}]
        """)
        if i == CYC[0]:
            A("s_memtime s[96:97]")
        if i == CYC[1]:
            A("s_memtime s[98:99]")
        A.label(l)

VL16 = 255; VT = 254; VH = 253; VT4 = 252
VD0 = 249; VD1 = 250; VD2 = 251
BK2 = 246; BV0 = 247; BV1 = 248
VQ2 = 245; VW = 244; VPF = 239; VJ = 238; VS = 240
WO_LO = 61440; WO_HI = 76800
STG = 138
XOLD = 138
CSP = 176

def wo_lds(sidx):
    return WO_HI + sidx * 5120 if sidx < 17 else WO_LO + (sidx - 17) * 5120

def poll(A, name, body_loads, cmps, tmp_s=37, first_done=False):
    lp = A.newlabel(name + "_p"); ld = A.newlabel(name + "_d"); lc = A.newlabel(name + "_c")
    if first_done:
        for t in cmps:
            A(t)
        A(f"s_cbranch_vccz {ld}")
    A(f"s_mov_b32 s{tmp_s}, {POLL_MAX}")
    A.label(lp)
    for t in body_loads:
        A(t)
    A("s_waitcnt vmcnt(0)")
    for t in cmps:
        A(t)
    A(f"""
    s_cbranch_vccz {ld}
    s_sleep 1
    s_sub_u32 s{tmp_s}, s{tmp_s}, 1
    s_cmp_lg_u32 s{tmp_s}, 0
    s_cbranch_scc1 {lp}
    """)
    A.label(ld)

def poll_team(A, name):
    poll(A, name, [f"buffer_load_dword v{VS}, v{VT4}, s[8:11], s18 offen sc1"],
         [f"v_cmp_gt_u32 vcc, s17, v{VS}"])

def team_flag(A, name, wave):
    lskip = A.newlabel(name + "_sk"); lsafe = A.newlabel(name + "_sf"); lg = A.newlabel(name + "_g")
    A(f"""
    s_cmp_lg_u32 s12, {wave}
    s_cbranch_scc1 {lskip}
    s_mov_b64 exec, 1
    v_mov_b32 v{VS}, s17
    v_mov_b32 v{VS+1}, s19
    s_cmp_lg_u32 s15, 0
    s_cbranch_scc1 {lsafe}
    buffer_store_dword v{VS}, v{VS+1}, s[8:11], 0 offen
    s_branch {lg}
    """)
    A.label(lsafe)
    A(f"""
    buffer_wbl2 sc1
    s_waitcnt vmcnt(0)
    buffer_store_dword v{VS}, v{VS+1}, s[8:11], 0 offen sc1
    """)
    A.label(lg)
    A("s_mov_b64 exec, -1")
    A.label(lskip)

def dbg_srd(A):
    A("""
    s_mov_b32 s52, s100
    s_and_b32 s53, s101, 0xffff
    s_mov_b32 s54, 256
    s_mov_b32 s55, 0x00020000
    """)

def find_mode(A, name):
    A(f"s_add_u32 s36, s18, {SF-TF:#x}")
    poll(A, name, [f"buffer_load_dword v{VS}, v{VT4}, s[8:11], s36 offen sc1"], [f"v_cmp_eq_u32 vcc, 0, v{VS}"])
    A(f"""
    s_add_u32 s36, s3, 1
    v_cmp_ne_u32 vcc, s36, v{VS}
    s_cmp_lg_u64 vcc, 0
    s_cselect_b32 s15, 1, {1 if FORCE_SAFE else 0}
    """)

def wait_all_started(A, name):
    A(f"s_mov_b32 s58, {GF:#x}")
    poll(A, name + "b", [f"buffer_load_dwordx4 v[{VS}:{VS+3}], v{VL16}, s[8:11], s58 offen sc1"],
         [f"v_min_u32 v{VS}, v{VS}, v{VS+1}",
          f"v_min3_u32 v{VS}, v{VS}, v{VS+2}, v{VS+3}",
          f"v_cmp_eq_u32 vcc, 0, v{VS}"])

def global_flag(A, name, wave, sval):
    l = A.newlabel(name)
    A(f"""
    s_cmp_lg_u32 s12, {wave}
    s_cbranch_scc1 {l}
    s_mov_b64 exec, 1
    v_mov_b32 v{VS}, {sval}
    v_mov_b32 v{VS+1}, s19
    buffer_store_dword v{VS}, v{VS+1}, s[8:11], s38 offen sc1
    s_mov_b64 exec, -1
    """)
    A.label(l)

def set_w_srd(A, nxt):
    A(f"""
    s_bitcmp{0 if nxt else 1}_b32 s16, 0
    s_cselect_b32 s20, s26, s24
    s_cselect_b32 s21, s27, s25
    s_and_b32 s21, s21, 0xffff
    """)

def w_dma(A, sidx):
    A(f"s_add_u32 m0, s63, {sidx*4096}")
    A(f"s_add_u32 s36, s61, {16*sidx*3840}")
    A.vmem(f"buffer_load_dwordx4 v{VW}, s[20:23], s36 offen lds", f"w{sidx}")

def w_stage(A, sidx, slot):
    A(f"s_add_u32 s36, s61, {16*sidx*3840}")
    A(f"buffer_load_dwordx4 v[{STG+4*slot}:{STG+4*slot+3}], v{VW}, s[20:23], s36 offen")

def w_unstage(A, sidx, slot, vbase):
    addr = sidx * 4096
    A(f"ds_write_b128 v{vbase + (addr >> 16)}, v[{STG+4*slot}:{STG+4*slot+3}] offset:{addr & 0xffff}")

NBG = 11
def bg_piece(A, n):
    if n == 10:
        A(f"""
        s_min_u32 s36, s12, 4
        s_lshl_b32 s36, s36, 10
        s_add_u32 m0, s36, {WO_HI + n*8192}
        s_add_u32 s36, s36, s62
        s_add_u32 s36, s36, {n*8192}
        """)
    else:
        A(f"s_add_u32 m0, s58, {n*8192}")
        A(f"s_add_u32 s36, s59, {n*8192}")
    A(f"buffer_load_dwordx4 v{VL16}, s[8:11], s36 offen lds")

def w_prefetch(A, srow32):
    A(f"s_mul_i32 s36, {srow32}, {32*3840}")
    A(f"buffer_load_dword v{VJ}, v{VPF}, s[20:23], s36 offen")

NST1 = 15
def bg2_setup(A):
    A(f"""
    s_lshl_b32 s52, s13, 4
    s_and_b32 s53, s14, 3
    s_lshl_b32 s53, s53, 2
    s_add_u32 s52, s52, s53
    s_add_u32 s52, s52, s12
    s_and_b32 s54, s52, 1
    s_lshl_b32 s54, s54, 8
    s_lshr_b32 s52, s52, 1
    s_mul_i32 s52, s52, 40960
    s_lshr_b32 s53, s14, 2
    s_mul_i32 s53, s53, 5120
    s_add_u32 s52, s52, s53
    s_add_u32 s52, s52, s54
    s_add_u32 s52, s52, {XF0:#x}
    v_bfe_u32 v{VS}, v{VL16}, 8, 1
    v_lshlrev_b32 v137, 9, v{VS}
    v_and_b32 v{VS}, 0xf0, v{VL16}
    v_add_u32 v137, v137, v{VS}
    v_lshl_add_u32 v137, v{VH}, 3, v137
    """)

def bg2_piece(A, i, stage):
    lh = A.newlabel("b2h"); le = A.newlabel("b2e")
    near = f"buffer_load_dword v{VJ}, v{VT4}, s[8:11], s18 offen sc1"
    A(f"""
    s_cmp_ge_u32 s12, 4
    s_cbranch_scc1 {lh}
    """)
    if i < 5:
        A(f"s_add_u32 s36, s52, {i*1024}")
        A(f"buffer_load_dwordx2 v[{XOLD+2*i}:{XOLD+2*i+1}], v137, s[8:11], s36 offen sc1")
    elif i == 9:
        A(f"""
        s_lshl_b32 s36, s12, 12
        s_add_u32 s36, s36, s62
        s_add_u32 s36, s36, {85*1024}
        v_lshlrev_b32 v{VS+2}, 7, v{VT}
        buffer_load_dword v{VJ}, v{VS+2}, s[8:11], s36 offen
        """)
    else:
        A(near)
    A(f"s_branch {le}")
    A.label(lh)
    if stage:
        w_stage(A, 15 + NST1 + i, NST1 + i)
    else:
        A(near)
    A.label(le)

def wo_prefetch(A, wo_off):
    A(f"""
    s_lshr_b32 s36, s14, 2
    s_mul_i32 s36, s36, 102400
    s_and_b32 s37, s14, 3
    s_mul_i32 s37, s37, 25600
    s_add_u32 s36, s36, s37
    s_lshl_b32 s37, s12, 12
    s_add_u32 s36, s36, s37
    s_add_u32 s36, s36, {wo_off:#x}
    v_lshlrev_b32 v{VS+2}, 7, v{VT}
    buffer_load_dword v{VJ}, v{VS+2}, s[8:11], s36 offen
    """)

XR = 112
WFIRST = 0
def emit_task_loads(A):
    A(f"""
    s_lshl_b32 s62, s13, 5
    s_add_u32 s62, s62, s14
    s_mov_b32 s51, 0x00020000
    s_and_b32 s37, s62, 3
    s_lshl_b32 s37, s37, 1
    v_add_u32 v3, s37, v{VH}
    v_mul_u32_u24 v4, 1280, v{VT}
    v_mul_u32_u24 v5, 160, v3
    v_add_u32 v4, v4, v5
    v_mul_u32_u24 v5, 5120, v3
    v_lshl_add_u32 v{XR-1}, v{VT}, 4, v5
    v_lshlrev_b32 v6, 14, v3
    v_lshl_add_u32 v{XR-2}, v{VT}, 3, v6
    v_and_b32 v6, 15, v2
    v_lshlrev_b32 v{XR-3}, 5, v6
    s_mov_b32 s60, 0
    s_cmp_eq_u32 s12, 1
    s_cbranch_scc1 L_l_cs
    s_cmp_eq_u32 s12, 2
    s_cbranch_scc1 L_l_wo
    s_cmp_eq_u32 s12, 3
    s_cbranch_scc1 L_l_c
    s_cmp_lg_u32 s12, 0
    s_cbranch_scc1 L_l_end
    s_mov_b32 s48, s40
    s_and_b32 s49, s41, 0xffff
    s_mov_b32 s50, 2621440
    s_lshr_b32 s36, s62, 2
    s_mul_i32 s46, s36, 40960
    """)
    for sl in range(5):
        R = XR + 8 * sl
        A(f"""
        buffer_load_dwordx2 v[{R}:{R+1}], v4, s[48:51], s46 offen offset:{sl*32}
        buffer_load_dwordx2 v[{R+4}:{R+5}], v4, s[48:51], s46 offen offset:{sl*32+8}
        buffer_load_dwordx2 v[{R+2}:{R+3}], v4, s[48:51], s46 offen offset:{sl*32+16}
        buffer_load_dwordx2 v[{R+6}:{R+7}], v4, s[48:51], s46 offen offset:{sl*32+24}
        """)
    A("s_branch L_l_end")
    A.label("L_l_cs")
    A(f"""
    s_cmp_ge_u32 s62, 240
    s_cbranch_scc1 L_l_end
    s_cmp_ge_u32 s62, 120
    s_cselect_b32 s48, s26, s24
    s_cselect_b32 s49, s27, s25
    s_cselect_b32 s36, 120, 0
    s_mov_b32 s60, {CS_A:#x}
    s_cselect_b32 s60, {CS_B:#x}, s60
    s_and_b32 s49, s49, 0xffff
    s_mov_b32 s50, 2457600
    s_sub_u32 s36, s62, s36
    s_lshr_b32 s37, s36, 3
    s_and_b32 s36, s36, 7
    s_mul_i32 s46, s36, {80*3840}
    s_lshl_b32 s56, s37, 8
    s_add_u32 s46, s46, s56
    s_lshl_b32 s56, s37, 9
    s_add_u32 s60, s60, s56
    s_lshl_b32 s56, s36, 13
    s_add_u32 s60, s60, s56
    v_lshrrev_b32 v3, 4, v2
    v_mul_u32_u24 v3, 3840, v3
    v_lshl_add_u32 v3, v6, 4, v3
    """)
    for i in range(20):
        A(f"s_add_u32 s56, s46, {4*i*3840}")
        A(f"buffer_load_dwordx4 v[{XR+4*i}:{XR+3+4*i}], v3, s[48:51], s56 offen")
    A("s_branch L_l_end")
    A.label("L_l_wo")
    A(f"""
    s_cmp_ge_u32 s62, 160
    s_cbranch_scc1 L_l_end
    s_cmp_ge_u32 s62, 80
    s_cselect_b32 s48, s98, s32
    s_cselect_b32 s49, s99, s33
    s_cselect_b32 s36, 80, 0
    s_mov_b32 s60, {WO_A:#x}
    s_cselect_b32 s60, {WO_B:#x}, s60
    s_and_b32 s49, s49, 0xffff
    s_mov_b32 s50, 819200
    s_sub_u32 s36, s62, s36
    s_mul_i32 s46, s36, 10240
    s_mul_i32 s37, s36, 205
    s_lshr_b32 s37, s37, 10
    s_mul_i32 s56, s37, 5
    s_sub_u32 s56, s36, s56
    s_lshr_b32 s57, s37, 2
    s_add_u32 s57, s57, 16
    s_and_b32 s58, s37, 3
    s_cmp_gt_u32 s56, 2
    s_cselect_b32 s59, 1, 0
    s_sub_u32 s59, s56, s59
    s_cmp_eq_u32 s56, 2
    s_cselect_b32 s37, s57, s37
    s_cselect_b32 s59, s58, s59
    s_mul_i32 s37, s37, 5120
    s_add_u32 s60, s60, s37
    s_lshl_b32 s59, s59, 8
    s_add_u32 s60, s60, s59
    v_lshlrev_b32 v4, 2, v2
    """)
    for i in range(8):
        A(f"s_add_u32 s56, s46, {i*1280}")
        for cg in range(5):
            A(f"buffer_load_dword v{XR+8*cg+i}, v4, s[48:51], s56 offen offset:{256*cg}")
    A("s_branch L_l_end")
    A.label("L_l_c")
    if int(os.environ.get("CODEPF", "1")):
        A(f"""
        s_getpc_b64 s[56:57]
        """)
        A.label("L_pc")
        A(f"""
        s_sub_u32 s56, s56, L_pc-{NAME}_kernel
        s_subb_u32 s57, s57, 0
        s_lshl_b32 s36, s14, 12
        v_lshlrev_b32 v3, 6, v2
        v_add_u32 v3, s36, v3
        v_min_u32 v3, L_code_end-{NAME}_kernel-4, v3
        v_mov_b32 v9, s57
        v_add_co_u32 v8, vcc, s56, v3
        s_nop 1
        v_addc_co_u32 v9, vcc, 0, v9, vcc
        global_load_dword v{VS+3}, v[8:9], off
        """)
    A(f"""
    v_lshlrev_b32 v3, 19, v2
    buffer_load_dword v{VJ}, v3, s[8:11], 0 offen offset:64 sc1
    s_lshr_b32 s36, s62, 6
    s_mul_i32 s36, s36, {KV_STRIDE}
    s_and_b32 s37, s62, 63
    s_mul_i32 s37, s37, {TS}
    s_add_u32 s36, s36, s37
    s_add_u32 s36, s36, {KVL + 81920:#x}
    v_mov_b32 v4, 0
    v_mov_b32 v5, 0
    v_mov_b32 v6, 0
    v_mov_b32 v7, 0
    v_mov_b32 v12, 0x3f803f80
    v_mov_b32 v13, 0x3f803f80
    v_mov_b32 v14, 0x3f803f80
    v_mov_b32 v15, 0x3f803f80
    s_mov_b64 exec, 1
    buffer_store_dwordx4 v[12:15], v4, s[8:11], s36 offen sc1
    s_mov_b64 exec, -1
    s_cmp_lg_u32 s62, 255
    s_cbranch_scc1 L_l_end
    s_mov_b32 s36, {FL:#x}
    buffer_store_dwordx4 v[4:7], v{VL16}, s[8:11], s36 offen sc1
    buffer_store_dwordx4 v[4:7], v{VL16}, s[8:11], s36 offen offset:1024 sc1
    buffer_store_dwordx4 v[4:7], v{VL16}, s[8:11], s36 offen offset:2048 sc1
    """)
    dbg_srd(A)
    A(f"""
    s_waitcnt vmcnt(0)
    v_mov_b32 v5, 1
    s_mov_b64 exec, 1
    buffer_store_dword v5, v4, s[52:55], 0 offen sc1
    s_mov_b64 exec, -1
    """)
    A.label("L_l_end")

W0 = 40
def emit_startup_tasks(A):
    lx = A.newlabel("xs"); lw = A.newlabel("xw")
    A(f"""
    s_cmp_lg_u32 s12, 0
    s_cbranch_scc1 {lx}
    s_lshr_b32 s36, s62, 2
    s_mul_i32 s46, s36, 40960
    s_add_u32 s46, s46, {XF0:#x}
    s_add_u32 s47, s46, 4096
    s_waitcnt vmcnt(0)
    """)
    for sl in range(5):
        R = XR + 8 * sl
        so = "s46" if sl < 4 else "s47"
        off = (sl % 4) * 1024
        A(f"""
        buffer_store_dwordx4 v[{R}:{R+3}], v{XR-1}, s[8:11], {so} offen offset:{off} sc1
        buffer_store_dwordx4 v[{R+4}:{R+7}], v{XR-1}, s[8:11], {so} offen offset:{off+512} sc1
        """)
    A("v_mov_b32 v11, 0")
    dbg_srd(A)
    A("buffer_load_dword v10, v11, s[52:55], 0 offen sc1")
    A.label(lx)
    A(f"""
    s_barrier
    s_cmp_lt_u32 s12, 4
    s_cbranch_scc1 {lw}
    s_cmp_ge_u32 s14, 30
    s_cbranch_scc1 L_notlb
    """)
    A.vm = []
    for sidx in range(W0):
        w_dma(A, sidx)
    A("s_branch L_notlb")
    A.label(lw)
    A(f"""
    s_cmp_eq_u32 s12, 1
    s_cbranch_scc1 L_t_cs
    s_cmp_eq_u32 s12, 2
    s_cbranch_scc1 L_t_wo
    s_cmp_lg_u32 s12, 0
    s_cbranch_scc1 L_notlb
    v_mov_b32 v8, 0
    v_mov_b32 v9, 0
    s_waitcnt vmcnt(0)
    """)
    A("v_mov_b32 v11, 0")
    dbg_srd(A)
    poll(A, "gate", [f"buffer_load_dword v10, v11, s[52:55], 0 offen sc1"], ["v_cmp_eq_u32 vcc, 0, v10"], first_done=True)
    A(f"""
    s_add_u32 s36, s3, 1
    s_mov_b32 s37, {SF-TF:#x}
    v_mov_b32 v10, s36
    v_mov_b32 v11, s19
    s_mov_b64 exec, 1
    buffer_store_dword v10, v11, s[8:11], s37 offen sc1
    s_mov_b64 exec, -1
    """)
    for r in range(XR, XR + 40):
        A(f"""
        v_lshlrev_b32 v10, 16, v{r}
        v_and_b32 v11, s31, v{r}
        v_add_f32 v8, v8, v10
        v_fmac_f32 v9, v10, v10
        v_add_f32 v8, v8, v11
        v_fmac_f32 v9, v11, v11
        """)
    A(f"""
    s_lshr_b32 s36, s62, 2
    s_lshl_b32 s36, s36, 8
    s_add_u32 s36, s36, {ST0:#x}
    buffer_store_dwordx2 v[8:9], v{XR-2}, s[8:11], s36 offen sc1
    s_branch L_notlb
    """)
    A.label("L_t_cs")
    A("""
    s_cmp_ge_u32 s62, 240
    s_cbranch_scc1 L_notlb
    """)
    for j in range(8):
        A(f"v_mov_b32 v{8+j}, 0")
    for i in range(20):
        A(f"s_waitcnt vmcnt({19-i})")
        for w in range(4):
            r = XR + 4 * i + w
            A(f"""
            v_lshlrev_b32 v16, 16, v{r}
            v_and_b32 v17, s31, v{r}
            v_add_f32 v{8+2*w}, v{8+2*w}, v16
            v_add_f32 v{9+2*w}, v{9+2*w}, v17
            """)
    for op in ("v_permlane32_swap_b32", "v_permlane16_swap_b32"):
        for j in range(8):
            A(f"v_mov_b32 v{16+j}, v{8+j}")
        A("s_nop 1")
        for j in range(8):
            A(f"{op} v{8+j}, v{16+j}")
        A("s_nop 1")
        for j in range(8):
            A(f"v_add_f32 v{8+j}, v{8+j}, v{16+j}")
    A(f"""
    s_mov_b64 exec, 0xffff
    buffer_store_dwordx4 v[8:11], v{XR-3}, s[8:11], s60 offen sc1
    buffer_store_dwordx4 v[12:15], v{XR-3}, s[8:11], s60 offen offset:16 sc1
    s_mov_b64 exec, -1
    s_branch L_notlb
    """)
    A.label("L_t_wo")
    A(f"""
    s_cmp_ge_u32 s62, 160
    s_cbranch_scc1 L_notlb
    s_mov_b32 s56, 0x05040100
    v_lshrrev_b32 v3, 3, v2
    v_and_b32 v4, 7, v2
    v_lshlrev_b32 v4, 5, v4
    """)
    for cg in range(5):
        A(f"""
        v_add_u32 v5, {8*cg}, v3
        v_mul_u32_u24 v6, 205, v5
        v_lshrrev_b32 v6, 10, v6
        v_mul_u32_u24 v7, 5, v6
        v_sub_u32 v7, v5, v7
        v_mul_u32_u24 v6, 102400, v6
        v_lshl_add_u32 v6, v7, 10, v6
        v_add_u32 v{52+cg}, v6, v4
        """)
    A("s_waitcnt vmcnt(0)")
    for cg in range(5):
        for p in range(4):
            A(f"v_perm_b32 v{12+8*cg+p}, v{XR+8*cg+2*p+1}, v{XR+8*cg+2*p}, s56")
            A(f"v_perm_b32 v{16+8*cg+p}, v{XR+8*cg+2*p+1}, v{XR+8*cg+2*p}, s30")
    for cg in range(5):
        A(f"buffer_store_dwordx4 v[{12+8*cg}:{15+8*cg}], v{52+cg}, s[8:11], s60 offen sc1")
        A(f"buffer_store_dwordx4 v[{16+8*cg}:{19+8*cg}], v{52+cg}, s[8:11], s60 offen offset:16 sc1")

def emit_main_setup(A):
    kernel_begin(A, NAME + "_kernel")
    kernels.append((NAME + "_kernel", 256, 256, 102))
    A(f"""
    s_load_dwordx2 s[4:5], s[0:1], 64
    s_load_dwordx2 s[6:7], s[0:1], 48
    s_load_dwordx2 s[24:25], s[0:1], 8
    s_load_dwordx2 s[26:27], s[0:1], 32
    s_load_dwordx2 s[100:101], s[0:1], 56
    s_load_dwordx2 s[40:41], s[0:1], 0
    s_load_dwordx2 s[32:33], s[0:1], 16
    s_load_dwordx2 s[98:99], s[0:1], 40
    s_cmp_ge_u32 s2, 256
    s_cbranch_scc1 L_exit
    s_getreg_b32 s3, hwreg(HW_REG_XCC_ID, 0, 4)
    """)
    if SCRAMBLE:
        A("""
        s_lshr_b32 s13, s2, 5
        s_and_b32 s14, s2, 31
        """)
    else:
        A("""
        s_and_b32 s13, s2, 7
        s_lshr_b32 s14, s2, 3
        """)
    A(f"""
    v_lshrrev_b32 v1, 6, v0
    v_and_b32 v2, 63, v0
    v_and_b32 v{VT}, 31, v0
    v_readfirstlane_b32 s12, v1
    v_bfe_u32 v{VH}, v0, 5, 1
    v_lshlrev_b32 v{VL16}, 4, v2
    v_lshlrev_b32 v{VT4}, 2, v{VT}
    v_cmp_eq_u32 s[28:29], 0, v{VH}
    v_lshrrev_b32 v3, 4, v2
    v_bfe_u32 v4, v2, 2, 2
    v_xor_b32 v4, v3, v4
    v_mul_u32_u24 v{VW}, 3840, v3
    v_lshl_add_u32 v{VW}, v4, 6, v{VW}
    v_and_b32 v3, 48, v{VL16}
    v_add_u32 v{VW}, v{VW}, v3
    s_mov_b32 s15, 0
    s_mov_b32 s16, 0
    s_mov_b32 s17, 0
    s_lshl_b32 s18, s13, 7
    s_add_u32 s18, s18, {TF:#x}
    s_lshl_b32 s19, s14, 2
    s_add_u32 s19, s19, s18
    s_mov_b32 s38, {GF-TF:#x}
    s_mov_b32 s30, 0x07060302
    s_mov_b32 s31, 0xffff0000
    s_mov_b32 s22, 2457600
    s_mov_b32 s23, 0x00020000
    s_mov_b32 s34, {KV_BYTES}
    s_mov_b32 s35, 0x00020000
    s_and_b32 s36, s12, 3
    s_lshl_b32 s63, s36, 10
    s_mul_i32 s61, s36, {4*3840}
    s_lshr_b32 s36, s14, 1
    s_lshl_b32 s36, s36, 8
    s_add_u32 s61, s61, s36
    s_waitcnt lgkmcnt(0)
    """)
    ws_srd(A, 8, 4)
    set_w_srd(A, False)
    if STAMPS:
        for i in range(34):
            A(f"s_mov_b32 s{64+i}, 0")
    if STAMPS == 1:
        A("s_memrealtime s[88:89]")
    emit_task_loads(A)
    A(f"""
    s_lshr_b32 s36, s14, 1
    s_and_b32 s37, s14, 1
    s_mul_i32 s39, s36, 2560
    s_mul_i32 s40, s37, 1536
    s_add_u32 s40, s40, s39
    v_add_u32 v{VD0}, s40, v{VL16}
    s_add_u32 s41, s39, 1024
    v_lshlrev_b32 v3, 4, v{VT}
    v_add_u32 v4, s41, v3
    s_lshl_b32 s42, s37, 3
    v_add_u32 v{VQ2}, s42, v4
    s_lshl_b32 s43, s37, 2
    s_mul_i32 s44, s14, 320
    s_add_u32 s44, s44, 40960
    s_mov_b32 s45, 10240
    """)
    def vsrc(dst, u):
        A(f"""
        v_mul_u32_u24 v5, 3277, v{u}
        v_lshrrev_b32 v5, 16, v5
        v_mul_u32_u24 v6, 20, v5
        v_sub_u32 v6, v{u}, v6
        v_add_u32 v6, s43, v6
        v_subrev_u32 v7, 20, v6
        v_cmp_gt_u32 s[46:47], 20, v6
        v_mad_u32_u24 v5, v5, s45, 0
        s_nop 0
        v_cndmask_b32 v6, v7, v6, s[46:47]
        v_lshl_add_u32 v5, v6, 4, v5
        v_add_u32 v{dst}, s44, v5
        """)
    vsrc(8, VT)
    A(f"""
    v_cndmask_b32 v{VD1}, v8, v4, s[28:29]
    v_subrev_u32 v{VD1}, 1024, v{VD1}
    v_add_u32 v9, 32, v2
    """)
    vsrc(8, 9)
    A(f"""
    v_mov_b32 v10, 81920
    v_cmp_gt_u32 s[46:47], 48, v2
    s_nop 1
    v_cndmask_b32 v{VD2}, v10, v8, s[46:47]
    v_subrev_u32 v{VD2}, 2048, v{VD2}
    v_add_u32 v5, s42, v3
    v_add_u32 v5, 1024, v5
    v_mov_b32 v6, 2816
    v_cndmask_b32 v{BK2}, v6, v5, s[28:29]
    v_cmp_gt_u32 s[46:47], 20, v{VT}
    v_cmp_gt_u32 s[48:49], 28, v{VT}
    v_mov_b32 v7, 12
    v_mov_b32 v8, 4
    v_cndmask_b32 v7, v7, v8, s[48:49]
    """)
    for j, dst in ((0, BV0), (1, BV1)):
        A(f"""
        v_mul_u32_u24 v5, 20, v{VH}
        v_add_u32 v5, {96 + 40*j}, v5
        v_add_u32 v6, v5, v7
        v_and_b32 v6, 15, v6
        v_add_u32 v6, 176, v6
        v_add_u32 v5, v5, v{VT}
        v_cndmask_b32 v5, v6, v5, s[46:47]
        v_lshlrev_b32 v{dst}, 4, v5
        """)
    A(f"""
    s_lshr_b32 s36, s14, 1
    s_lshl_b32 s36, s36, 8
    v_lshrrev_b32 v5, 1, v2
    v_mul_u32_u24 v5, 3840, v5
    v_and_b32 v6, 1, v2
    v_lshl_add_u32 v5, v6, 7, v5
    v_add_u32 v{VPF}, s36, v5
    """)
    emit_startup_tasks(A)
    A.label("L_notlb")
    if STAMPS == 1:
        A("s_memrealtime s[82:83]")
    lsb = A.newlabel("sb")
    A(f"""
    s_cmp_ge_u32 s12, 4
    s_cbranch_scc1 {lsb}
    s_waitcnt vmcnt(0)
    s_cmp_lg_u32 s12, 0
    s_cbranch_scc1 {lsb}
    """)
    find_mode(A, "m0")
    A.label(lsb)
    A("s_barrier")
    global_flag(A, "g0", 1, "1")

def emit_qkv(A):
    ACC = 0; BF = 64; AR = 96; NAR = 20; WB = 192; NM = 196; RS = 198; CSR = 200; STR = 208; RSV = 208; TMP = 224
    A.label("L_qkv")
    A.vm = []; A.lg = []
    stamp(A, 0)
    A(f"""
    s_and_b32 s41, s16, 1
    s_cmp_eq_u32 s16, 3
    s_cselect_b32 s60, 2, s41
    s_mul_i32 s60, s60, {KV_STRIDE}
    s_add_u32 s60, s60, {KV0:#x}
    s_add_u32 s32, s4, s60
    s_addc_u32 s33, s5, 0
    s_and_b32 s33, s33, 0xffff
    s_cmp_ge_u32 s14, 30
    s_cbranch_scc1 L_qkv_idle
    s_cmp_ge_u32 s12, 4
    s_cbranch_scc1 L_qkv_help
    s_and_b32 s39, s14, 1
    s_lshl_b32 s40, s13, 1
    s_add_u32 s39, s39, s40
    s_lshr_b32 s40, s14, 1
    s_lshl_b32 s42, s39, 2
    s_add_u32 s42, s42, s12
    s_lshl_b32 s43, s40, 9
    s_add_u32 s43, s43, {CS_A:#x}
    s_cmp_lg_u32 s41, 0
    s_cselect_b64 s[54:55], -1, 0
    s_lshl_b32 s44, s42, 8
    s_add_u32 s44, s44, {ST0:#x}
    s_mul_i32 s45, s42, 40960
    s_add_u32 s45, s45, {XF0:#x}
    s_sub_u32 s51, s60, {KVL:#x}
    v_bfe_u32 v{TMP+1}, v{VL16}, 6, 2
    v_bfe_u32 v{TMP+2}, v{VL16}, 4, 2
    v_bfe_u32 v{TMP+3}, v{VL16}, 8, 1
    v_lshl_add_u32 v{TMP+4}, v{VH}, 2, v{TMP+1}
    v_lshlrev_b32 v{TMP+4}, 8, v{TMP+4}
    v_lshl_add_u32 v{TMP+4}, v{TMP+3}, 5, v{TMP+4}
    v_lshl_add_u32 v{TMP+4}, v{TMP+2}, 3, v{TMP+4}
    """)
    for cb in range(4):
        A(f"v_xor_b32 v{TMP+2}, {cb}, v{TMP+1}")
        A(f"v_lshl_add_u32 v{WB+cb}, v{TMP+2}, 6, v{TMP+4}")
    A(f"""
    v_lshlrev_b32 v{TMP+6}, 3, v{VT}
    v_lshl_add_u32 v{TMP+7}, v{VH}, 15, v{VT4}
    s_cmp_ge_u32 s40, 10
    s_cbranch_scc1 L_qkv_v
    """)
    APRE = 8
    GO = int(os.environ.get('GO', '9'))

    def main(is_v):
        A.vm = []; A.lg = []
        def aload(k):
            if k % 4 == 0:
                A(f"s_add_u32 s46, s45, {k*1024}")
            r = AR + 4 * (k % NAR)
            A.vmem(f"buffer_load_dwordx4 v[{r}:{r+3}], v{VL16}, s[8:11], s46 offen offset:{1024*(k%4)} sc1", f"a{k}")
        def rd(sidx, cb):
            if sidx in (16, 32):
                A(f"v_add_u32 v{WB+cb}, 0x10000, v{WB+cb}")
            r = BF + 16 * (sidx % 2) + 4 * cb
            off = (sidx % 16) * 4096
            A.lds(f"ds_read_b64_tr_b16 v[{r}:{r+1}], v{WB+cb} offset:{off}", (sidx, cb))
            A.lds(f"ds_read_b64_tr_b16 v[{r+2}:{r+3}], v{WB+cb} offset:{off+2048}", (sidx, cb))
        lnp = A.newlabel("qkv_nopoll")
        A(f"""
        s_cmp_eq_u32 s16, 0
        s_cbranch_scc1 {lnp}
        """)
        poll_team(A, "qkv")
        A.label(lnp)
        stamp(A, 1)
        for k in range(APRE):
            aload(k)
        def bar0():
            l = A.newlabel("b0")
            A(f"""
            s_cmp_lg_u32 s16, 0
            s_cbranch_scc1 {l}
            s_barrier
            """)
            A.label(l)
        A("s_barrier")
        for sidx in range(2):
            for cb in range(4):
                rd(sidx, cb)
        stamp(A, 2)
        fill = {}
        def put(step, items):
            for it in items:
                while len(fill.setdefault(step, [])) >= 12:
                    step += 1
                fill[step].append(it)
            return step
        def lines(txt):
            return [(lambda t: (lambda: A(t)))(t.strip()) for t in txt.strip().split("\n") if t.strip()]
        def stload(i):
            A(f"s_add_u32 s53, s44, {i*16384}")
            A.vmem(f"buffer_load_dwordx2 v[{STR+2*i}:{STR+2*i+1}], v{TMP+6}, s[8:11], s53 offen sc1", "st")
        for i in range(8):
            put(i // 4, [lambda i=i: stload(i)])
        inv = f32(1.0 / 640.0)
        txt = "".join(f"v_add_f32 v{STR}, v{STR}, v{STR+2*i}\nv_add_f32 v{STR+1}, v{STR+1}, v{STR+2*i+1}\n" for i in range(1, 8))
        txt += f"""
        v_mul_f32 v{TMP}, {inv:#x}, v{STR}
        v_mul_f32 v{TMP+1}, {inv:#x}, v{STR+1}
        v_fma_f32 v{TMP+1}, -v{TMP}, v{TMP}, v{TMP+1}
        v_max_f32 v{TMP+1}, 0, v{TMP+1}
        v_cvt_pk_bf16_f32 v{TMP+1}, v{TMP+1}, v{TMP+1}
        v_and_b32 v{TMP+1}, s31, v{TMP+1}
        v_add_f32 v{TMP+1}, {f32(1e-5):#x}, v{TMP+1}
        v_cvt_pk_bf16_f32 v{TMP+1}, v{TMP+1}, v{TMP+1}
        v_and_b32 v{TMP+1}, s31, v{TMP+1}
        v_sqrt_f32 v{TMP+1}, v{TMP+1}
        v_sub_f32 v{TMP}, 0, v{TMP}
        v_cvt_pk_bf16_f32 v{TMP+1}, v{TMP+1}, v{TMP+1}
        v_and_b32 v{TMP+1}, s31, v{TMP+1}
        v_rcp_f32 v{RS}, v{TMP+1}
        v_cvt_pk_bf16_f32 v{NM}, v{TMP}, v{TMP}
        v_mov_b32 v{TMP+2}, 0
        v_and_b32 v{NM+1}, 0xffff, v{NM}
        v_cndmask_b32 v{NM}, v{TMP+2}, v{NM}, s[28:29]
        v_cndmask_b32 v{NM+1}, v{TMP+2}, v{NM+1}, s[28:29]
        """
        if not is_v:
            txt += f"""
            v_mul_f32 v{RS}, s52, v{RS}
            s_nop 0
            v_mov_b32 v{RS+1}, v{RS}
            """
        stats_items = [lambda: A.wait_vm("st")] + lines(txt)
        post = stats_items[1:]
        if is_v:
            for r in range(16):
                tok = 8 * (r // 4) + r % 4
                post.append(lambda tok=tok: A(f"v_add_u32 v{TMP+4}, {4*tok}, v{TMP+3}"))
                post.append(lambda r=r: A.lds(f"ds_bpermute_b32 v{RSV+r}, v{TMP+4}, v{RS}", "bp"))
        post += lines("".join(f"v_cndmask_b32 v{CSR+i}, v{CSP+i}, v{CSP+8+i}, s[54:55]\n" for i in range(8)))
        st = put(12, stats_items[:1] + post)
        def started():
            l = A.newlabel("qkv_st")
            A(f"""
            s_cmp_lg_u32 s16, 0
            s_cbranch_scc1 {l}
            v_lshrrev_b32 v{TMP}, 1, v{VL16}
            s_lshl_b32 s59, s12, 9
            v_add_u32 v{TMP+1}, s59, v{TMP}
            s_barrier
            """)
            for q in range(8):
                A(f"ds_read_b64 v[{CSP+2*q}:{CSP+2*q+1}], v{TMP} offset:{512*q}")
            A(f"ds_read_b64 v[{STR}:{STR+1}], v{TMP+1} offset:4096")
            for i in range(2, 16):
                A(f"v_mov_b32 v{STR+i}, 0")
            A("s_waitcnt lgkmcnt(0)")
            for it in post:
                it()
            A("s_waitcnt lgkmcnt(0)")
            A("s_nop 1")
            A.label(l)
        assert st < 40, st
        nl = APRE
        for sidx in range(40):
            nxt = sidx + 2
            if nxt in (GO, 23):
                l = A.newlabel("go")
                A(f"""
                s_bitcmp{1 if nxt == GO else 0}_b32 s16, 0
                s_cbranch_scc1 {l}
                s_barrier
                """)
                A.label(l)
            A.wait_vm(f"a{sidx}")
            todo = list(fill.get(sidx, []))
            for cb in range(4):
                A.wait_lg((sidx, cb))
                acc = v(ACC + 16 * cb, 16)
                bf = v(BF + 16 * (sidx % 2) + 4 * cb, 4)
                xa = v(AR + 4 * (sidx % NAR), 4)
                A(f"v_mfma_f32_32x32x16_bf16 {acc}, {xa if is_v else bf}, {bf if is_v else xa}, {acc if sidx else '0'}")
                if nxt < 40:
                    rd(nxt, cb)
                if (cb in (1, 3) or sidx < 4) and nl < 40 and nl < sidx + NAR:
                    aload(nl); nl += 1
                for it in todo[:3]:
                    it()
                todo = todo[3:]
        assert nl == 40
        started()
        for cb in range(4):
            acc = v(ACC + 16 * cb, 16); cs = v(CSR + 2 * cb, 2); nm = v(NM, 2)
            A(f"v_mfma_f32_32x32x8_bf16 {acc}, {nm if is_v else cs}, {cs if is_v else nm}, {acc}")
        A.wait_lg_all()
        stamp(A, 3)
        A.nop(8)

    A(f"""
    s_mul_i32 s47, s42, 40960
    s_add_u32 s47, s47, {QF0:#x}
    s_mul_i32 s48, s42, {TS}
    s_add_u32 s48, s48, {KVL - 5*8192:#x}
    s_cmp_ge_u32 s40, 5
    s_cselect_b32 s47, s48, s47
    s_cselect_b32 s52, 1.0, {QSCALE:#x}
    s_lshl_b32 s48, s40, 13
    s_add_u32 s47, s47, s48
    s_add_u32 s48, s47, 4096
    s_add_u32 s49, s47, s51
    s_add_u32 s50, s48, s51
    """)
    main(False)
    prev = None
    for cb in range(4):
        for g in (0, 2):
            r = ACC + 16 * cb + 4 * g
            for p in range(4):
                A(f"v_pk_mul_f32 v[{r+2*p}:{r+2*p+1}], v[{r+2*p}:{r+2*p+1}], v[{RS}:{RS+1}]")
            for p in range(4):
                A(f"v_cvt_pk_bf16_f32 v{r+p}, v{r+2*p}, v{r+2*p+1}")
            if prev is not None:
                A(prev)
            prev = f"""
            v_permlane32_swap_b32 v{r}, v{r+2}
            v_permlane32_swap_b32 v{r+1}, v{r+3}
            buffer_store_dwordx4 v[{r}:{r+3}], v{VL16}, s[8:11], {'s47' if cb < 2 else 's48'} offen offset:{(cb%2)*2048+g*512}
            """
    A(prev)
    lq = A.newlabel("qkv_q")
    A(f"""
    s_cmp_lt_u32 s40, 5
    s_cbranch_scc1 {lq}
    """)
    for cb in range(4):
        for g in (0, 2):
            r = ACC + 16 * cb + 4 * g
            A(f"buffer_store_dwordx4 v[{r}:{r+3}], v{VL16}, s[8:11], {'s49' if cb < 2 else 's50'} offen offset:{(cb%2)*2048+g*512} sc1")
    A("s_waitcnt vmcnt(8)")
    A("s_branch L_qkv_done")
    A.label(lq)
    A("s_waitcnt vmcnt(0)")
    A("s_branch L_qkv_done")

    A.label("L_qkv_v")
    A(f"""
    s_mul_i32 s47, s42, {TS}
    s_lshl_b32 s48, s40, 11
    s_add_u32 s47, s47, s48
    s_add_u32 s47, s47, {KVL + 40960 - 10*2048:#x}
    s_add_u32 s48, s47, 20480
    s_add_u32 s49, s47, s51
    s_add_u32 s50, s48, s51
    s_mov_b32 s52, 0
    v_mul_u32_u24 v{TMP+5}, 10240, v{VH}
    v_lshl_add_u32 v{TMP+5}, v{VT}, 4, v{TMP+5}
    v_lshlrev_b32 v{TMP+3}, 4, v{VH}
    """)
    main(True)
    for cb in range(4):
        for j in range(2):
            r = ACC + 16 * cb + 8 * j
            for p in range(4):
                A(f"v_pk_mul_f32 v[{r+2*p}:{r+2*p+1}], v[{r+2*p}:{r+2*p+1}], v[{RSV+8*j+2*p}:{RSV+8*j+2*p+1}]")
            for p in range(4):
                A(f"v_cvt_pk_bf16_f32 v{r+p}, v{r+2*p}, v{r+2*p+1}")
            A(f"buffer_store_dwordx4 v[{r}:{r+3}], v{TMP+5}, s[8:11], {'s48' if j else 's47'} offen offset:{512*cb}")
    for cb in range(4):
        for j in range(2):
            r = ACC + 16 * cb + 8 * j
            A(f"buffer_store_dwordx4 v[{r}:{r+3}], v{TMP+5}, s[8:11], {'s50' if j else 's49'} offen offset:{512*cb} sc1")
    A("s_waitcnt vmcnt(8)")
    A("s_branch L_qkv_done")

    A.label("L_qkv_idle")
    A("""
    s_cmp_lg_u32 s16, 0
    s_cbranch_scc1 L_qkv_done
    s_cmp_lg_u32 s12, 0
    s_cbranch_scc1 L_qkv_done
    """)
    wait_all_started(A, "qi")
    A("s_branch L_qkv_done")

    A.label("L_qkv_help")
    A.vm = []; A.lg = []
    lodd = A.newlabel("hodd"); lrev = A.newlabel("rev"); lh0 = A.newlabel("h0"); lcs = A.newlabel("hcs")
    A(f"""
    s_cmp_eq_u32 s16, 0
    s_cbranch_scc1 {lh0}
    s_waitcnt vmcnt(0)
    """)
    A.label(lh0)
    A(f"""
    s_waitcnt vmcnt({40-GO}) lgkmcnt(0)
    s_barrier
    s_waitcnt vmcnt(0)
    s_barrier
    """)
    A(f"""
    s_mul_i32 s36, s13, {8*TS}
    s_add_u32 s36, s36, {KVL + 81920:#x}
    s_mov_b32 s37, {TS}
    v_and_b32 v{VS+2}, 7, v{VT}
    v_mul_lo_u32 v{VS+2}, v{VS+2}, s37
    buffer_load_dword v{VJ}, v{VS+2}, s[8:11], s36 offen sc1
    """)
    set_w_srd(A, True)
    A(f"""
    s_bitcmp1_b32 s16, 0
    s_cbranch_scc1 {lodd}
    """)
    THR = int(os.environ.get("THR", "8"))
    def stage_all(order):
        for n, i in enumerate(order):
            if n == 12:
                A(f"""
                s_and_b32 s37, s14, 1
                s_lshl_b32 s37, s37, 2
                s_add_u32 s37, s37, s12
                s_sub_u32 s37, s37, 4
                """)
                w_prefetch(A, "s37")
            w_stage(A, 15 + i, i)
            if n >= THR:
                A(f"s_waitcnt vmcnt({THR})")
    A(f"""
    s_bitcmp1_b32 s14, 0
    s_cbranch_scc1 {lrev}
    """)
    stage_all(list(range(25)))
    A(f"s_branch {lcs}")
    A.label(lrev)
    stage_all(list(range(24, -1, -1)))
    A.label(lcs)
    A("""
    s_cmp_lg_u32 s16, 0
    s_cbranch_scc1 L_qkv_done
    """)
    wait_all_started(A, "hs")
    A(f"""
    s_lshr_b32 s39, s14, 1
    s_lshl_b32 s39, s39, 9
    s_lshr_b32 s40, s63, 3
    s_add_u32 s39, s39, s40
    s_add_u32 s39, s39, {CS_A:#x}
    s_lshl_b32 s40, s13, 1
    s_and_b32 s41, s14, 1
    s_add_u32 s40, s40, s41
    s_lshl_b32 s40, s40, 10
    s_lshr_b32 s41, s63, 2
    s_add_u32 s40, s40, s41
    s_add_u32 s40, s40, {ST0:#x}
    v_lshl_add_u32 v0, v{VH}, 15, v{VT4}
    v_lshlrev_b32 v1, 3, v{VT}
    v_lshrrev_b32 v2, 1, v{VL16}
    s_lshr_b32 s41, s63, 1
    v_add_u32 v2, s41, v2
    """)
    for q in range(8):
        A(f"s_add_u32 s36, s39, {(q//4)*0x10000 + (q%4)*8192}")
        A(f"buffer_load_dword v{8+q}, v0, s[8:11], s36 offen sc1")
    for i in range(8):
        A(f"s_add_u32 s36, s40, {i*16384}")
        A(f"buffer_load_dwordx2 v[{16+2*i}:{17+2*i}], v1, s[8:11], s36 offen sc1")
    A("s_waitcnt vmcnt(0)")
    for q in range(2):
        r = 8 + 4 * q
        A(f"""
        v_add_f32 v{r}, v{r}, v{r+1}
        v_add_f32 v{r+2}, v{r+2}, v{r+3}
        v_add_f32 v{r}, v{r}, v{r+2}
        v_mov_b32 v{r+1}, v{r}
        """)
    for i in range(1, 8):
        A(f"v_add_f32 v16, v16, v{16+2*i}")
        A(f"v_add_f32 v17, v17, v{17+2*i}")
    for q in range(2):
        A(f"v_permlane32_swap_b32 v{8+4*q}, v{9+4*q}")
    for q in range(2):
        r = 8 + 4 * q; d = 32 + 2 * q
        A(f"""
        v_add_f32 v{r}, v{r}, v{r+1}
        v_and_b32 v{r+2}, s31, v{r}
        v_sub_f32 v{r+3}, v{r}, v{r+2}
        v_and_b32 v{d+1}, s31, v{r+3}
        v_perm_b32 v{d}, v{d+1}, v{r+2}, s30
        v_sub_f32 v{r+3}, v{r+3}, v{d+1}
        v_lshrrev_b32 v{d+1}, 16, v{r+3}
        """)
    A("""
    ds_write_b64 v2, v[32:33]
    ds_write_b64 v2, v[34:35] offset:2048
    ds_write_b64 v2, v[16:17] offset:4096
    s_waitcnt lgkmcnt(0)
    s_barrier
    """)
    A("s_branch L_qkv_done")
    A.label(lodd)
    A("""
    s_cmp_eq_u32 s16, 3
    s_cbranch_scc1 L_qkv_done
    """)
    for i in range(NST1):
        w_stage(A, 15 + i, i)
    A.label("L_qkv_done")
    stamp(A, 4)
    set_w_srd(A, True)
    A(f"""
    s_and_b32 s62, s16, 1
    s_mul_i32 s62, s62, {WO_B - WO_A}
    s_add_u32 s62, s62, {WO_A:#x}
    s_lshr_b32 s36, s14, 2
    s_mul_i32 s36, s36, 102400
    s_add_u32 s62, s62, s36
    """)
    lm = A.newlabel("mode")
    A(f"""
    s_cmp_lg_u32 s16, 0
    s_cbranch_scc1 {lm}
    s_cmp_lg_u32 s12, 4
    s_cbranch_scc1 {lm}
    """)
    find_mode(A, "m4")
    A.label(lm)
    A("""
    s_add_u32 s17, s17, 1
    s_barrier
    """)
    team_flag(A, "qkv", 4)
    stamp(A, 5)
    A.vm = []; A.lg = []
S0 = 0; S1 = 16; OACC = 32; PP = 48; K1R = 56; K2R = 60; Q2R = 62; Q1R = 64; V0R = 68; V1R = 72
AK1 = 76; AK2 = 77; AV0 = 78; AV1 = 79; AT = 80
HI = 132

def laddr(reg, off):
    if off >= 49152:
        return f"v{HI + reg - AK1} offset:{off - 32768}"
    return f"v{reg} offset:{off}"
MSK_D = 100; MSK_F = 116; CM = S1; FK2 = AT + 15; FV0 = AT + 16; FV1 = AT + 17

def attn_step(A, cur, nxt, qk_c, rdk, pv1, rdv1, pv0, rdv0, hooks=None):
    hooks = hooks or {}
    def ex(i):
        for r in range(4 * i, 4 * i + 4):
            A(f"v_exp_f32 v{cur+r}, v{cur+r}")
        A(f"v_cvt_pk_bf16_f32 v{PP+2*i}, v{cur+4*i}, v{cur+4*i+1}")
        A(f"v_cvt_pk_bf16_f32 v{PP+2*i+1}, v{cur+4*i+2}, v{cur+4*i+3}")
    if "a" in hooks: hooks["a"]()
    if qk_c is not None:
        A.wait_lg("k1")
        A(f"v_mfma_f32_32x32x16_bf16 {v(nxt,16)}, {v(K1R,4)}, {v(Q1R,4)}, {qk_c}")
    if rdk is not None:
        A.lds(f"ds_read_b128 {v(K1R,4)}, {laddr(AK1, rdk)}", "k1")
    ex(0)
    if qk_c is not None:
        A.wait_lg("k2")
        A(f"v_mfma_f32_32x32x8_bf16 {v(nxt,16)}, {v(K2R,2)}, {v(Q2R,2)}, {v(nxt,16)}")
    if rdk is not None:
        A.lds(f"ds_read_b64 {v(K2R,2)}, {laddr(AK2, rdk)}", "k2")
    ex(1)
    if pv1:
        A.wait_lg("v1")
        A(f"v_mfma_f32_32x32x16_bf16 {v(OACC,16)}, {v(V1R,4)}, {v(PP+4,4)}, {v(OACC,16)}")
    if rdv1 is not None:
        A.lds(f"ds_read_b128 {v(V1R,4)}, {laddr(AV1, rdv1)}", "v1")
    if "b" in hooks: hooks["b"]()
    ex(2)
    if "c" in hooks: hooks["c"]()
    if pv0:
        A.wait_lg("v0")
        A(f"v_mfma_f32_32x32x16_bf16 {v(OACC,16)}, {v(V0R,4)}, {v(PP,4)}, {v(OACC,16)}")
    if rdv0 is not None:
        A.lds(f"ds_read_b128 {v(V0R,4)}, {laddr(AV0, rdv0)}", "v0")
    ex(3)

def bias_from(A, t):
    A(f"""
    v_mov_b32 v{AT+1}, v{t}
    s_nop 1
    v_permlane32_swap_b32 v{t}, v{AT+1}
    s_nop 1
    v_max_f32 v{t}, v{t}, v{AT+1}
    v_sub_f32 v{t}, 0, v{t}
    """)
    split3(A, t, AT + 2, AT + 3, AT + 4, AT + 5, 30, 31)
    A(f"""
    v_cndmask_b32 v{Q2R}, v{AT+2}, v{Q2R}, s[28:29]
    v_cndmask_b32 v{Q2R+1}, v{AT+3}, v{Q2R+1}, s[28:29]
    """)

def rowmax_to_bias(A, src):
    t = AT
    A(f"v_max3_f32 v{t}, v{src}, v{src+1}, v{src+2}")
    for i in range(3, 15, 2):
        A(f"v_max3_f32 v{t}, v{t}, v{src+i}, v{src+i+1}")
    A(f"v_max_f32 v{t}, v{t}, v{src+15}")
    bias_from(A, t)

def zero_bias(A):
    A(f"""
    v_mov_b32 v{AT}, 0
    v_cndmask_b32 v{Q2R}, v{AT}, v{Q2R}, s[28:29]
    v_cndmask_b32 v{Q2R+1}, v{AT}, v{Q2R+1}, s[28:29]
    """)

def first_tile_bias(A, koff, cmask):
    A.lds(f"ds_read_b128 {v(K1R,4)}, v{AK1} offset:{koff}", "k1")
    A.lds(f"ds_read_b64 {v(K2R,2)}, v{AK2} offset:{koff}", "k2")
    A.wait_lg_all()
    A(f"v_mfma_f32_32x32x16_bf16 {v(S1,16)}, {v(K1R,4)}, {v(Q1R,4)}, {cmask}")
    A(f"v_mfma_f32_32x32x8_bf16 {v(S1,16)}, {v(K2R,2)}, {v(Q2R,2)}, {v(S1,16)}")
    A(f"v_mfma_f32_32x32x16_bf16 {v(S0,16)}, {v(K1R,4)}, {v(Q1R,4)}, {cmask}")
    A.nop(11)
    rowmax_to_bias(A, S1)
    A.nop(2)
    A(f"v_mfma_f32_32x32x8_bf16 {v(S0,16)}, {v(K2R,2)}, {v(Q2R,2)}, {v(S0,16)}")

def emit_masks(A):
    A(f"v_mov_b32 v{AT+8}, 0")
    A(f"v_mov_b32 v{AT+9}, {NEG_BIG:#x}")
    A(f"v_lshlrev_b32 v{AT+10}, 2, v{VH}")
    A(f"v_sub_u32 v{AT+10}, v{VT}, v{AT+10}")
    for r in range(16):
        j = 8 * (r // 4) + r % 4
        sp = 48 + 2 * (r % 4)
        A(f"v_cmp_le_i32 s[{sp}:{sp+1}], {j}, v{AT+10}")
        if r % 4 == 3:
            for q in range(4):
                rr = r - 3 + q; sq = 48 + 2 * q
                A(f"v_cndmask_b32 v{MSK_D+rr}, v{AT+9}, v{AT+8}, s[{sq}:{sq+1}]")
                A(f"v_cndmask_b32 v{MSK_F+rr}, v{AT+8}, v{AT+9}, s[{sq}:{sq+1}]")

def emit_fallback(A, label, store_label, sliding):
    A.label(label)
    A.vm = []; A.lg = []
    A("s_add_u32 s56, s18, s38")
    poll(A, "fbf", [flag_load(A, "s56")], [f"v_cmp_gt_u32 vcc, s57, v{VF}"])
    if sliding:
        A("""
        s_sub_u32 s46, s39, 8
        s_cmp_lt_u32 s39, 8
        s_cselect_b32 s46, 0, s46
        s_mov_b32 s47, s39
        """)
    else:
        A("""
        s_mov_b32 s46, 0
        s_mov_b32 s47, 63
        """)
    t = AT + 6
    A(f"""
    v_mov_b32 v{t}, 81920
    v_cndmask_b32 v{FK2}, v{t}, v{VQ2}, s[28:29]
    s_and_b32 s48, s14, 1
    s_lshl_b32 s48, s48, 2
    v_add_u32 v{t+1}, s48, v{VT}
    v_subrev_u32 v{t+2}, 20, v{t+1}
    v_cmp_gt_u32 s[50:51], 20, v{t+1}
    v_cmp_gt_u32 s[52:53], 20, v{VT}
    s_mul_i32 s48, s14, 320
    s_add_u32 s48, s48, 40960
    v_cndmask_b32 v{t+1}, v{t+2}, v{t+1}, s[50:51]
    v_mul_u32_u24 v{t+2}, 10240, v{VH}
    v_lshl_add_u32 v{t+1}, v{t+1}, 4, v{t+2}
    v_add_u32 v{t+1}, s48, v{t+1}
    v_add_u32 v{t+2}, 20480, v{t+1}
    v_cndmask_b32 v{FV0}, v{t}, v{t+1}, s[52:53]
    v_cndmask_b32 v{FV1}, v{t}, v{t+2}, s[52:53]
    """)
    zero_bias(A)
    A(f"v_mov_b32 v{AT+12}, {NEG_BIG:#x}")
    for r in range(16):
        A(f"v_mov_b32 v{OACC+r}, 0")
    A("s_mov_b32 s49, 0")
    lp = A.newlabel("fbpass"); lt = A.newlabel("fbtile"); l2 = A.newlabel("fbp2"); ln = A.newlabel("fbnext")
    A.label(lp)
    A("s_mov_b32 s48, s46")
    A.label(lt)
    A(f"""
    s_mul_i32 s50, s48, {TS}
    buffer_load_dwordx4 {v(K1R,4)}, v{VD0}, s[32:35], s50 offen sc1
    buffer_load_dwordx2 {v(K2R,2)}, v{FK2}, s[32:35], s50 offen sc1
    buffer_load_dwordx4 {v(V0R,4)}, v{FV0}, s[32:35], s50 offen sc1
    buffer_load_dwordx4 {v(V1R,4)}, v{FV1}, s[32:35], s50 offen sc1
    """)
    for r in range(16):
        A(f"v_mov_b32 v{CM+r}, 0")
    if sliding:
        lnd = A.newlabel("fbnd"); lnf = A.newlabel("fbnf")
        A(f"""
        s_cmp_lg_u32 s48, s39
        s_cbranch_scc1 {lnd}
        """)
        for r in range(16):
            A(f"v_mov_b32 v{CM+r}, v{MSK_D+r}")
        A.label(lnd)
        A(f"""
        s_add_u32 s51, s48, 8
        s_cmp_lg_u32 s51, s39
        s_cbranch_scc1 {lnf}
        """)
        for r in range(16):
            A(f"v_mov_b32 v{CM+r}, v{MSK_F+r}")
        A.label(lnf)
    A(f"""
    s_waitcnt vmcnt(0)
    s_nop 1
    v_mfma_f32_32x32x16_bf16 {v(S0,16)}, {v(K1R,4)}, {v(Q1R,4)}, {v(CM,16)}
    v_mfma_f32_32x32x8_bf16 {v(S0,16)}, {v(K2R,2)}, {v(Q2R,2)}, {v(S0,16)}
    s_nop 15
    s_cmp_lg_u32 s49, 0
    s_cbranch_scc1 {l2}
    """)
    for i in range(0, 16, 2):
        A(f"v_max3_f32 v{AT+12}, v{AT+12}, v{S0+i}, v{S0+i+1}")
    A(f"s_branch {ln}")
    A.label(l2)
    for r in range(16):
        A(f"v_exp_f32 v{S0+r}, v{S0+r}")
    A("s_nop 0")
    for i in range(8):
        A(f"v_cvt_pk_bf16_f32 v{PP+i}, v{S0+2*i}, v{S0+2*i+1}")
    A(f"""
    s_nop 1
    v_mfma_f32_32x32x16_bf16 {v(OACC,16)}, {v(V0R,4)}, {v(PP,4)}, {v(OACC,16)}
    v_mfma_f32_32x32x16_bf16 {v(OACC,16)}, {v(V1R,4)}, {v(PP+4,4)}, {v(OACC,16)}
    s_nop 15
    """)
    A.label(ln)
    A(f"""
    s_add_u32 s48, s48, 1
    s_cmp_le_u32 s48, s47
    s_cbranch_scc1 {lt}
    s_cmp_lg_u32 s49, 0
    s_cbranch_scc1 {store_label}
    s_mov_b32 s49, 1
    v_mov_b32 v{AT+13}, v{AT+4}
    v_mov_b32 v{AT+14}, v{AT+5}
    v_mov_b32 v{AT}, v{AT+12}
    """)
    bias_from(A, AT)
    A(f"""
    v_mov_b32 v{AT+4}, v{AT+13}
    v_mov_b32 v{AT+5}, v{AT+14}
    s_branch {lp}
    """)

VF = 136

def attn_common_pre(A):
    A(f"""
    s_lshl_b32 s39, s13, 3
    s_add_u32 s39, s39, s12
    s_mul_i32 s40, s39, 40960
    s_add_u32 s40, s40, {QF0:#x}
    s_mul_i32 s41, s12, {LT}
    s_mul_i32 s45, s39, {TS}
    s_add_u32 s45, s45, {KVL:#x}
    s_add_u32 s57, s16, 2
    s_lshl_b32 s36, s12, 10
    s_add_u32 s58, s36, {WO_HI}
    s_add_u32 s59, s36, s62
    """)
    for r in range(16):
        A(f"v_mov_b32 v{OACC+r}, 0")

def attn_wait(A, name):
    lw = A.newlabel(name + "_w"); l0 = A.newlabel(name + "_0")
    A(f"""
    s_cmp_ge_u32 s12, 4
    s_cbranch_scc1 {l0}
    s_waitcnt vmcnt(0)
    """)
    A.label(l0)
    A("s_barrier")
    global_flag(A, name + "_g", 4, "s57")
    A(f"""
    s_cmp_lg_u32 s12, 7
    s_cbranch_scc1 {lw}
    """)
    poll_team(A, name)
    A.label(lw)
    A("s_barrier")
    A.vm = []
    A.vmem(f"buffer_load_dwordx4 {v(Q1R,4)}, v{VD0}, s[8:11], s40 offen sc1", "q")
    A.vmem(f"buffer_load_dwordx2 {v(Q2R,2)}, v{VQ2}, s[8:11], s40 offen sc1", "q")

def flag_load(A, steam):
    return f"buffer_load_dword v{VF}, v{VT4}, s[8:11], {steam} offen sc1"

def flag_check(A, name, steam):
    poll(A, name, [flag_load(A, steam)], [f"v_cmp_gt_u32 vcc, s57, v{VF}"], first_done=True)

def attn_epilogue(A, fb_label, store_label):
    t = AT
    stamp(A, 8)
    A(f"""
    s_mov_b32 s36, {f32(FB_THR):#x}
    s_lshl_b32 s43, s39, 15
    s_add_u32 s43, s43, {OM0:#x}
    s_lshl_b32 s44, s14, 9
    s_add_u32 s43, s43, s44
    s_lshl_b32 s44, s14, 14
    s_lshl_b32 s45, s39, 8
    s_add_u32 s44, s44, s45
    s_add_u32 s44, s44, {OM0 + OT_OFF:#x}
    v_lshrrev_b32 v{t+4}, 4, v{VT}
    v_lshlrev_b32 v{t+4}, 14, v{t+4}
    v_lshl_add_u32 v{t+4}, v{VH}, 8, v{t+4}
    v_and_b32 v{t+5}, 15, v{VT}
    v_lshl_add_u32 v{t+4}, v{t+5}, 4, v{t+4}
    v_lshlrev_b32 v{t+5}, 3, v{VT}
    v_cmp_ngt_f32 vcc, s36, v{OACC+12}
    s_cbranch_vccnz {fb_label}
    """)
    A.label(store_label)
    A(f"""
    v_rcp_f32 v{t+2}, v{OACC+12}
    s_nop 0
    v_mov_b32 v{t+3}, v{t+2}
    """)
    for p in range(6):
        A(f"v_pk_mul_f32 v[{OACC+2*p}:{OACC+2*p+1}], v[{OACC+2*p}:{OACC+2*p+1}], v[{t+2}:{t+3}]")
    for p in range(6):
        A(f"v_cvt_pk_bf16_f32 v{OACC+p}, v{OACC+2*p}, v{OACC+2*p+1}")
    A(f"""
    v_permlane32_swap_b32 v{OACC}, v{OACC+2}
    v_permlane32_swap_b32 v{OACC+1}, v{OACC+3}
    buffer_store_dwordx4 v[{OACC}:{OACC+3}], v{t+4}, s[8:11], s43 offen
    s_mov_b64 exec, s[28:29]
    buffer_store_dwordx2 v[{OACC+4}:{OACC+5}], v{t+5}, s[8:11], s44 offen
    s_mov_b64 exec, -1
    s_branch L_att_done
    """)

PRIO = [None, None, 2, None, 1, 0, 3, None]

def emit_attn_full(A):
    A.label("L_attf")
    A.vm = []; A.lg = []
    attn_common_pre(A)
    A(f"""
    v_mov_b32 v{AK1}, v{VL16}
    v_mov_b32 v{AK2}, v{BK2}
    v_mov_b32 v{AV0}, v{BV0}
    v_mov_b32 v{AV1}, v{BV1}
    v_add_u32 v{HI}, 0x8000, v{VL16}
    v_add_u32 v{HI+1}, 0x8000, v{BK2}
    v_add_u32 v{HI+2}, 0x8000, v{BV0}
    v_add_u32 v{HI+3}, 0x8000, v{BV1}
    s_mul_i32 s46, s12, {TS}
    s_add_u32 s55, s13, 1
    s_and_b32 s55, s55, 7
    s_lshl_b32 s56, s55, 7
    s_add_u32 s56, s56, {GF:#x}
    s_mov_b32 s42, {GF:#x}
    """)
    bg2_setup(A)
    attn_wait(A, "af")
    stamp(A, 6)
    A("s_mov_b32 m0, s41")
    A("s_nop 0")
    for i, vd in enumerate((VD0, VD1, VD2)):
        A.vmem(f"buffer_load_dwordx4 v{vd}, s[8:11], s45 offen offset:{1024*i} sc1 lds", "c0")
    A.wait_vm("q")
    zero_bias(A)
    A.wait_vm("c0")
    A("s_barrier")
    stamp(A, 7)
    A.vmem(flag_load(A, "s56"), "f1")
    first_tile_bias(A, 0, "0")
    def toff(t):
        return ((t // 8) % 3) * CHUNK + (t % 8) * LT
    A.lds(f"ds_read_b128 {v(K1R,4)}, v{AK1} offset:{LT}", "k1")
    A.lds(f"ds_read_b64 {v(K2R,2)}, v{AK2} offset:{LT}", "k2")
    A.lds(f"ds_read_b128 {v(V0R,4)}, v{AV0}", "v0")
    A("s_setprio 3")
    A.nop(7)
    allf = f"buffer_load_dwordx4 v[{AT+4}:{AT+7}], v{VL16}, s[8:11], s42 offen sc1"
    allc = [f"v_min_u32 v{AT+4}, v{AT+4}, v{AT+5}",
            f"v_min3_u32 v{AT+4}, v{AT+4}, v{AT+6}, v{AT+7}",
            f"v_cmp_gt_u32 vcc, s57, v{AT+4}"]
    def src(c):
        A(f"""
        s_add_u32 s55, s13, {c}
        s_and_b32 s55, s55, 7
        s_mul_i32 s47, s55, {8*TS}
        s_add_u32 s47, s47, s46
        """)
    def piece(c, i):
        A(f"s_add_u32 m0, s41, {(c % 3) * CHUNK}")
        A("s_nop 0")
        A.vmem(f"buffer_load_dwordx4 v{(VD0, VD1, VD2)[i]}, s[32:35], s47 offen offset:{1024*i} sc1 lds", f"c{c}")
    def bg(fn):
        def f():
            fn()
            A.vm.append("bg")
        return f
    sched = {}
    def at(t, pos, fn):
        sched.setdefault((t, pos), []).append(fn)
    def early():
        A.wait_vm("f1")
        flag_check(A, "afe", "s56")
        src(1)
        for i in range(3):
            piece(1, i)
        A.vmem(allf, "fa")
    at(1, "b", early)
    for c in range(7):
        def hk(c=c):
            A.wait_vm(f"c{c+1}" if c else "fa")
            A("s_barrier")
            A(f"s_setprio {PRIO[6]}")
            if c == 0:
                poll(A, "afa", [allf], allc, first_done=True)
            if c + 2 < 8:
                src(c + 2)
        at(8 * c + 6, "a", hk)
        if c + 2 < 8:
            at(8 * c + 6, "b", lambda c=c: piece(c + 2, 0))
            at(8 * c + 7, "a", lambda c=c: piece(c + 2, 1))
            at(8 * c + 7, "b", lambda c=c: piece(c + 2, 2))
    n = 0
    for c in range(1, 7):
        for st in (1, 3):
            if n < NBG:
                at(8 * c + st, "b", bg(lambda n=n: bg_piece(A, n)))
                n += 1
    for i in range(10):
        at(8 * (1 + i // 2) + (0, 2)[i % 2], "b", bg(lambda i=i: bg2_piece(A, i, True)))
    at(8 * 6 + 4, "b", bg(lambda: w_prefetch(A, "s12")))
    at(8 * 6 + 5, "b", bg(lambda: wo_prefetch(A, WO_A)))
    for t in range(64):
        i = t % 8
        cur, nxt = (S0, S1) if t % 2 == 0 else (S1, S0)
        hooks = {}
        for pos in "abc":
            if (t, pos) in sched:
                hooks[pos] = (lambda fs: (lambda: [f() for f in fs]))(sched[(t, pos)])
        if t >= 56:
            pr = {56: 3, 60: 2, 62: 1, 63: 0}.get(t)
        else:
            pr = PRIO[i] if i != 6 else None
        if pr is not None:
            A(f"s_setprio {pr}")
        attn_step(A, cur, nxt, "0" if t + 1 < 64 else None, toff(t + 2) if t + 2 < 64 else None,
                  t > 0, toff(t), True, toff(t + 1) if t + 1 < 64 else None, hooks)
    A.wait_lg("v1")
    A.nop(1)
    A(f"v_mfma_f32_32x32x16_bf16 {v(OACC,16)}, {v(V1R,4)}, {v(PP+4,4)}, {v(OACC,16)}")
    attn_epilogue(A, "L_af_fb", "L_af_store")
    emit_fallback(A, "L_af_fb", "L_af_store", False)

def emit_attn_slide(A):
    A.label("L_atts")
    A.vm = []; A.lg = []
    attn_common_pre(A)
    A(f"""
    s_sub_u32 s47, s45, {KVL + 8*TS:#x}
    s_add_u32 s56, s13, 7
    s_and_b32 s56, s56, 7
    s_lshl_b32 s56, s56, 7
    s_add_u32 s56, s56, {GF:#x}
    v_add_u32 v{AT+12}, s47, v{VD0}
    v_add_u32 v{AT+13}, s47, v{VD1}
    v_add_u32 v{AT+14}, s47, v{VD2}
    v_add_u32 v{AK1}, s41, v{VL16}
    v_add_u32 v{AK2}, s41, v{BK2}
    v_add_u32 v{AV0}, s41, v{BV0}
    v_add_u32 v{AV1}, s41, v{BV1}
    """)
    emit_masks(A)
    bg2_setup(A)
    attn_wait(A, "as")
    stamp(A, 6)
    A(f"s_add_u32 m0, s41, {CHUNK}")
    A("s_nop 0")
    for i, vd in enumerate((VD0, VD1, VD2)):
        A.vmem(f"buffer_load_dwordx4 v{vd}, s[8:11], s45 offen offset:{1024*i} sc1 lds", "c0")
    for k in (0, 1, 2, 3, 4, 9):
        bg2_piece(A, k, False)
        A.vm.append("bg")
    A.vmem(flag_load(A, "s56"), "f")
    A.wait_vm("q")
    zero_bias(A)
    A.wait_vm("c0")
    order = list(range(8, -1, -1))
    first_tile_bias(A, order[0] * LT, v(MSK_D, 16))
    lz = A.newlabel("as_z")
    A.wait_vm("f")
    A(f"""
    s_cmp_eq_u32 s13, 0
    s_cbranch_scc1 {lz}
    """)
    flag_check(A, "asf", "s56")
    A.label(lz)
    A("s_mov_b32 m0, s41")
    A("s_nop 0")
    for i in range(3):
        A.vmem(f"buffer_load_dwordx4 v{AT+12+i}, s[32:35], 0 offen offset:{1024*i} sc1 lds", "c1")
    A("s_waitcnt vmcnt(0)")
    A("s_barrier")
    stamp(A, 7)
    A.lds(f"ds_read_b128 {v(K1R,4)}, v{AK1} offset:{order[1]*LT}", "k1")
    A.lds(f"ds_read_b64 {v(K2R,2)}, v{AK2} offset:{order[1]*LT}", "k2")
    A.lds(f"ds_read_b128 {v(V0R,4)}, v{AV0} offset:{order[0]*LT}", "v0")
    n = len(order)
    sprio = {0: 3, 4: 2, 6: 1, 7: 0}
    for i in range(n):
        cur, nxt = (S0, S1) if i % 2 == 0 else (S1, S0)
        qk_c = None if i + 1 >= n else (v(MSK_F, 16) if order[i + 1] == 0 else "0")
        rdk = order[i + 2] * LT if i + 2 < n else None
        if i in sprio:
            A(f"s_setprio {sprio[i]}")
        hooks = {}
        for q, pos in enumerate("ab"):
            if 2 * i + q < NBG:
                hooks[pos] = (lambda k: (lambda: bg_piece(A, k)))(2 * i + q)
        attn_step(A, cur, nxt, qk_c, rdk, i > 0, order[i] * LT, True, order[i + 1] * LT if i + 1 < n else None, hooks)
    A.wait_lg("v1")
    A.nop(1)
    A(f"v_mfma_f32_32x32x16_bf16 {v(OACC,16)}, {v(V1R,4)}, {v(PP+4,4)}, {v(OACC,16)}")
    attn_epilogue(A, "L_as_fb", "L_as_store")
    emit_fallback(A, "L_as_fb", "L_as_store", True)

def emit_oproj(A):
    ACC = 0; BF = 20; OFR = 60; XO = 148; VB1 = 160; VB2 = 161; VX = 162; VTL = 163; T = 164; V16 = 172; VQ = 173
    A.label("L_att_done")
    stamp(A, 9)
    A("""
    s_add_u32 s17, s17, 1
    s_waitcnt vmcnt(0) lgkmcnt(0)
    s_barrier
    """)
    team_flag(A, "att", 0)
    A.vm = []; A.lg = []
    stamp(A, 10)
    A(f"""
    s_and_b32 s39, s14, 3
    s_lshr_b32 s40, s14, 2
    s_cmp_ge_u32 s12, 4
    s_cbranch_scc1 L_op_help
    s_lshl_b32 s41, s13, 4
    s_lshl_b32 s42, s39, 2
    s_add_u32 s41, s41, s42
    s_add_u32 s41, s41, s12
    s_lshl_b32 s43, s41, 14
    s_add_u32 s43, s43, {OM0:#x}
    s_lshl_b32 s44, s41, 7
    s_add_u32 s44, s44, {OM0 + OT_OFF:#x}
    s_lshr_b32 s45, s41, 1
    s_mul_i32 s45, s45, 40960
    s_mul_i32 s46, s40, 5120
    s_add_u32 s45, s45, s46
    s_add_u32 s45, s45, {XF0:#x}
    s_add_u32 s46, s45, 4096
    s_and_b32 s47, s41, 1
    s_lshl_b32 s47, s47, 8
    v_bfe_u32 v{V16}, v{VL16}, 4, 4
    v_lshrrev_b32 v{VQ}, 8, v{VL16}
    v_add_u32 v{VB1}, 0x10000, v{VL16}
    v_add_u32 v{VB2}, 0x20000, v{VL16}
    v_lshlrev_b32 v{VX}, 9, v{VQ}
    v_lshl_add_u32 v{VX}, v{V16}, 4, v{VX}
    v_add_u32 v{VX}, s47, v{VX}
    v_lshlrev_b32 v{VTL}, 15, v{VQ}
    v_lshl_add_u32 v{VTL}, v{V16}, 3, v{VTL}
    """)
    def rd(sidx, cb):
        addr = wo_lds(sidx) + cb * 1024
        base = (VL16, VB1, VB2)[addr >> 16]
        r = BF + 20 * (sidx % 2) + 4 * cb
        A.lds(f"ds_read_b128 v[{r}:{r+3}], v{base} offset:{addr & 0xffff}", (sidx, cb))
    for sidx in range(2):
        for cb in range(5):
            rd(sidx, cb)
    for i in range(10):
        A(f"v_lshlrev_b32 v{ACC+2*i}, 16, v{XOLD+i}")
        A(f"v_and_b32 v{ACC+2*i+1}, s31, v{XOLD+i}")
    poll_team(A, "op")
    stamp(A, 11)
    def oload(k):
        if k < 16:
            if k % 4 == 0:
                A(f"s_add_u32 s47, s43, {k*1024}")
            A.vmem(f"buffer_load_dwordx4 v[{OFR+4*k}:{OFR+4*k+3}], v{VL16}, s[8:11], s47 offen offset:{1024*(k%4)} sc1", f"o{k}")
        else:
            A(f"s_add_u32 s47, s44, {(k-16)*131072}")
            A(f"s_add_u32 s48, s44, {(k-16)*131072 + 16384}")
            A.vmem(f"buffer_load_dwordx2 v[{OFR+4*k}:{OFR+4*k+1}], v{VTL}, s[8:11], s47 offen sc1", f"o{k}")
            A.vmem(f"buffer_load_dwordx2 v[{OFR+4*k+2}:{OFR+4*k+3}], v{VTL}, s[8:11], s48 offen sc1", f"o{k}")
    OPRE = 10
    for k in range(OPRE):
        oload(k)
    A("s_barrier")
    stamp(A, 12)
    nl = OPRE
    for sidx in range(20):
        nxt = sidx + 2
        A.wait_vm(f"o{sidx}")
        for cb in range(5):
            A.wait_lg((sidx, cb))
            acc = v(ACC + 4 * cb, 4)
            A(f"v_mfma_f32_16x16x32_bf16 {acc}, {v(BF+20*(sidx%2)+4*cb,4)}, {v(OFR+4*sidx,4)}, {acc}")
            if nxt < 20:
                rd(nxt, cb)
            if cb in (1, 3) and nl < 20:
                oload(nl); nl += 1
    lnb = A.newlabel("opnb")
    A(f"""
    s_cmp_eq_u32 s16, {LAST}
    s_cbranch_scc1 {lnb}
    s_barrier
    """)
    A.label(lnb)
    stamp(A, 13)
    A.nop(5)
    for cb in range(5):
        r = ACC + 4 * cb
        A(f"v_cvt_pk_bf16_f32 v{XO+2*cb}, v{r}, v{r+1}")
        A(f"v_cvt_pk_bf16_f32 v{XO+2*cb+1}, v{r+2}, v{r+3}")
    A("s_nop 0")
    for gi in range(3):
        A(f"v_permlane32_swap_b32 v{XO+4*gi}, v{XO+4*gi+2}")
        A(f"v_permlane32_swap_b32 v{XO+4*gi+1}, v{XO+4*gi+3}")
    A(f"""
    s_cmp_eq_u32 s16, {LAST}
    s_cbranch_scc1 L_op_last
    buffer_store_dwordx4 v[{XO}:{XO+3}], v{VX}, s[8:11], s45 offen
    buffer_store_dwordx4 v[{XO+4}:{XO+7}], v{VX}, s[8:11], s45 offen offset:2048
    s_mov_b64 exec, s[28:29]
    buffer_store_dwordx4 v[{XO+8}:{XO+11}], v{VX}, s[8:11], s46 offen
    s_mov_b64 exec, -1
    v_pk_add_f32 v[{T}:{T+1}], v[{ACC}:{ACC+1}], v[{ACC+2}:{ACC+3}]
    v_pk_mul_f32 v[{T+2}:{T+3}], v[{ACC}:{ACC+1}], v[{ACC}:{ACC+1}]
    v_pk_fma_f32 v[{T+2}:{T+3}], v[{ACC+2}:{ACC+3}], v[{ACC+2}:{ACC+3}], v[{T+2}:{T+3}]
    """)
    for i in range(2, 10):
        r = ACC + 2 * i
        A(f"v_pk_add_f32 v[{T}:{T+1}], v[{T}:{T+1}], v[{r}:{r+1}]")
        A(f"v_pk_fma_f32 v[{T+2}:{T+3}], v[{r}:{r+1}], v[{r}:{r+1}], v[{T+2}:{T+3}]")
    A(f"""
    v_add_f32 v{T}, v{T}, v{T+1}
    v_add_f32 v{T+1}, v{T+2}, v{T+3}
    v_mov_b32 v{T+2}, v{T}
    v_mov_b32 v{T+3}, v{T+1}
    s_lshl_b32 s47, s40, 14
    s_lshl_b32 s48, s41, 7
    v_permlane32_swap_b32 v{T}, v{T+2}
    v_permlane32_swap_b32 v{T+1}, v{T+3}
    s_add_u32 s47, s47, s48
    s_add_u32 s47, s47, {ST0:#x}
    v_add_f32 v{T}, v{T}, v{T+2}
    v_add_f32 v{T+1}, v{T+1}, v{T+3}
    v_mov_b32 v{T+2}, v{T}
    v_mov_b32 v{T+3}, v{T+1}
    v_lshlrev_b32 v{T+4}, 3, v{V16}
    s_nop 0
    v_permlane16_swap_b32 v{T}, v{T+2}
    v_permlane16_swap_b32 v{T+1}, v{T+3}
    s_nop 0
    v_add_f32 v{T}, v{T}, v{T+2}
    v_add_f32 v{T+1}, v{T+1}, v{T+3}
    s_mov_b64 exec, 0xffff
    buffer_store_dwordx2 v[{T}:{T+1}], v{T+4}, s[8:11], s47 offen
    s_mov_b64 exec, -1
    s_waitcnt vmcnt(0)
    s_branch L_op_done
    """)
    A.label("L_op_last")
    A(f"""
    s_mov_b32 s20, s6
    s_and_b32 s21, s7, 0xffff
    s_mov_b32 s22, 2621440
    s_mul_i32 s47, s41, {16*1280}
    s_mul_i32 s48, s40, 160
    s_add_u32 s47, s47, s48
    v_mul_u32_u24 v{T+4}, 1280, v{V16}
    v_lshrrev_b32 v{T+5}, 1, v{VQ}
    v_lshl_add_u32 v{T+4}, v{T+5}, 5, v{T+4}
    v_and_b32 v{T+5}, 1, v{VQ}
    v_lshl_add_u32 v{T+4}, v{T+5}, 3, v{T+4}
    """)
    for gi in range(3):
        if gi == 2:
            A("s_mov_b64 exec, s[28:29]")
        A(f"buffer_store_dwordx2 v[{XO+4*gi}:{XO+4*gi+1}], v{T+4}, s[20:23], s47 offen offset:{64*gi}")
        A(f"buffer_store_dwordx2 v[{XO+4*gi+2}:{XO+4*gi+3}], v{T+4}, s[20:23], s47 offen offset:{64*gi+16}")
    A("s_mov_b64 exec, -1")
    A("s_branch L_fin")

    A.label("L_op_help")
    A.vm = []; A.lg = []
    A(f"""
    s_add_u32 s41, s62, s63
    s_add_u32 s41, s41, {85*1024}
    s_add_u32 s42, s63, {WO_LO}
    """)
    lh = A.newlabel("oph")
    for n in range(4):
        if n == 3:
            A(f"""
            s_cmp_eq_u32 s12, 7
            s_cbranch_scc1 {lh}
            """)
        A(f"s_add_u32 m0, s42, {n*4096}")
        A(f"s_add_u32 s43, s41, {n*4096}")
        A.vmem(f"buffer_load_dwordx4 v{VL16}, s[8:11], s43 offen lds", "wo")
    A.label(lh)
    A(f"""
    v_add_u32 v0, s63, v{VL16}
    v_add_u32 v1, 0x10000, v0
    v_add_u32 v2, 0x20000, v0
    s_waitcnt vmcnt(0)
    s_barrier
    s_cmp_eq_u32 s16, {LAST}
    s_cbranch_scc1 L_fin
    """)
    for sidx in range(15):
        w_dma(A, sidx)
    A("s_barrier")
    for i in range(10):
        w_unstage(A, 15 + i, i, 0)
    A.label("L_op_done")
    stamp(A, 14)
    A("""
    s_add_u32 s17, s17, 1
    s_barrier
    """)
    team_flag(A, "op", 0)
    stamp(A, 15)
    lu = A.newlabel("unst")
    A(f"""
    s_cmp_lt_u32 s12, 4
    s_cbranch_scc1 {lu}
    """)
    for i in range(10, 25):
        w_unstage(A, 15 + i, i, 0)
    A.label(lu)
    A("""
    s_add_u32 s16, s16, 1
    s_branch L_qkv
    """)
    A.label("L_fin")
    if STAMPS:
        A(f"""
        s_mov_b64 exec, 1
        s_waitcnt vmcnt(0) lgkmcnt(0)
        s_lshl_b32 s36, s2, 3
        s_add_u32 s36, s36, s12
        s_lshl_b32 s36, s36, 7
        s_add_u32 s36, s36, {STAMP_BASE:#x}
        v_mov_b32 v0, 0
        s_sub_u32 s65, s98, s96
        """)
        for i in range(16):
            A(f"""
            v_mov_b32 v2, s{64+2*i}
            v_mov_b32 v3, s{65+2*i}
            buffer_store_dwordx2 v[2:3], v0, s[8:11], s36 offen offset:{8*i}
            s_waitcnt vmcnt(0)
            """)
    A.label("L_exit")
    A("s_endpgm")
    A.label("L_code_end")

def build():
    global kernels
    kernels = []
    A = Asm()
    emit_main_setup(A)
    emit_qkv(A)
    A("""
    s_bitcmp1_b32 s16, 0
    s_cbranch_scc1 L_attf
    """)
    emit_attn_slide(A)
    emit_attn_full(A)
    emit_oproj(A)
    body = A.text()
    errs = check_text(body)
    for e in errs:
        print("HAZARD", e, file=sys.stderr)
    ref = open(f"cdna_kernels/{NAME}.s.ref").read().split("\n")
    out = [l for l in ref if l.startswith(";") and "aunch" not in l]
    out.append("; @launch grid=(256,1,1) block=(512,1,1) lds=163840")
    out.append('.amdgcn_target "amdgcn-amd-amdhsa--gfx950"')
    out.append(".text")
    out.append(body)
    out.append('.section .rodata,"a"')
    for lab, nv, acc, ns in kernels:
        out.append(f""".p2align 6
.amdhsa_kernel {lab}
  .amdhsa_next_free_vgpr {nv}
  .amdhsa_next_free_sgpr {ns}
  .amdhsa_accum_offset {acc}
  .amdhsa_group_segment_fixed_size 0
  .amdhsa_kernarg_size 72
  .amdhsa_user_sgpr_count 2
  .amdhsa_user_sgpr_kernarg_segment_ptr 1
  .amdhsa_system_sgpr_workgroup_id_x 1
  .amdhsa_float_denorm_mode_32 3
.end_amdhsa_kernel""")
    return "\n".join(out) + "\n", len(errs)

if __name__ == "__main__":
    text, nerr = build()
    path = sys.argv[1] if len(sys.argv) > 1 else f"cdna_kernels/{NAME}.s"
    open(path, "w").write(text)
    print("wrote", path, len(text), "bytes; hazards:", nerr)
```
